```python
import torch

def _softmax(x, axis=-1):
    return torch.softmax(x, dim=axis)
def _gelu(x):
    return torch.nn.functional.gelu(x, approximate="tanh")
def _silu(x):
    return torch.nn.functional.silu(x)
def _sigmoid(x):
    return torch.sigmoid(x)
def _layernorm(x, axis=-1, eps=1e-5):
    m = x.mean(dim=axis, keepdim=True)
    v = x.var(dim=axis, keepdim=True, unbiased=False)
    return (x - m) / torch.sqrt(v + eps)
def _scatter_add(tgt, idx, src, axis=0):
    return tgt.clone().index_add_(axis, idx, src)
def _segment_sum(src, seg, n):
    out = torch.zeros((n,) + src.shape[1:], dtype=src.dtype)
    return out.index_add_(0, seg, src)
def _pad(x, pw):
    flat = tuple(v for pair in reversed(pw) for v in pair)
    return torch.nn.functional.pad(x, flat)

kernel_name = 'concat_heads__gqa_block_cached__gqa_block_cached__near_ridge'

def setup_inputs():

    _w = (lambda a: (lambda t: t.to(torch.bfloat16) if t.is_floating_point() else t)(torch.as_tensor(a)))
    def _A_setup():
        B, Sq, D = 8, 80, 576
        Hq, Hkv, Sk, Dh = 32, 16, 1024, 128
        assert Hq % Hkv == 0, (Hq, Hkv)
        return {
            "x": _w((lambda *s: torch.randn(*s, dtype=torch.bfloat16) * 0.8)(B, Sq, D)),
            "k_cache": _w((lambda *s: torch.randn(*s, dtype=torch.bfloat16) * 0.8)(B, Hkv, Sk, Dh)),
            "v_cache": _w((lambda *s: torch.randn(*s, dtype=torch.bfloat16) * 0.05)(B, Hkv, Sk, Dh)),
            "wq": _w((lambda *s: torch.randn(*s, dtype=torch.bfloat16) * 0.8)(D, Hq * Dh) * (D ** -0.5)),
            "wo": _w((lambda *s: torch.randn(*s, dtype=torch.bfloat16) * 0.05)(Hq * Dh, D) * ((Hq * Dh) ** -0.5)),
        }
    _A_in = _A_setup()

    def _B_setup():
        B, Sq, D = 8, 80, 576
        Hq, Hkv, Sk, Dh = 32, 16, 1024, 128
        assert Hq % Hkv == 0, (Hq, Hkv)
        return {
            "x": _w((lambda *s: torch.randn(*s, dtype=torch.bfloat16) * 0.8)(B, Sq, D)),
            "k_cache": _w((lambda *s: torch.randn(*s, dtype=torch.bfloat16) * 0.8)(B, Hkv, Sk, Dh)),
            "v_cache": _w((lambda *s: torch.randn(*s, dtype=torch.bfloat16) * 0.05)(B, Hkv, Sk, Dh)),
            "wq": _w((lambda *s: torch.randn(*s, dtype=torch.bfloat16) * 0.8)(D, Hq * Dh) * (D ** -0.5)),
            "wo": _w((lambda *s: torch.randn(*s, dtype=torch.bfloat16) * 0.05)(Hq * Dh, D) * ((Hq * Dh) ** -0.5)),
        }
    _B_in = _B_setup()

    return {
        "A_x": _A_in["x"],
        "A_k_cache": _A_in["k_cache"],
        "A_v_cache": _A_in["v_cache"],
        "A_wq": _A_in["wq"],
        "A_wo": _A_in["wo"],
        "B_x": _B_in["x"],
        "B_k_cache": _B_in["k_cache"],
        "B_v_cache": _B_in["v_cache"],
        "B_wq": _B_in["wq"],
        "B_wo": _B_in["wo"],
    }

def reference(A_x, A_k_cache, A_v_cache, A_wq, A_wo, B_x, B_k_cache, B_v_cache, B_wq, B_wo):
    def _A_ref(x, k_cache, v_cache, wq, wo):
        B, Sq, D = x.shape
        Hq, Dh = 32, 128
        Hkv = k_cache.shape[1]
        rep = Hq // Hkv
        q = (lambda x, *d: x.permute(*d))((x @ wq).reshape(B, Sq, Hq, Dh), 0, 2, 1, 3)
        k = (lambda x, n, axis: torch.repeat_interleave(x, n, dim=axis))(k_cache, rep, axis=1)
        v = (lambda x, n, axis: torch.repeat_interleave(x, n, dim=axis))(v_cache, rep, axis=1)
        scores = torch.einsum("bhqd,bhkd->bhqk", q, k) * (Dh ** -0.5)
        p = _softmax(scores, axis=-1)
        o = torch.einsum("bhqk,bhkd->bhqd", p, v)
        return (lambda x, *d: x.permute(*d))(o, 0, 2, 1, 3).reshape(B, Sq, Hq * Dh) @ wo

    def _B_ref(x, k_cache, v_cache, wq, wo):
        B, Sq, D = x.shape
        Hq, Dh = 32, 128
        Hkv = k_cache.shape[1]
        rep = Hq // Hkv
        q = (lambda x, *d: x.permute(*d))((x @ wq).reshape(B, Sq, Hq, Dh), 0, 2, 1, 3)
        k = (lambda x, n, axis: torch.repeat_interleave(x, n, dim=axis))(k_cache, rep, axis=1)
        v = (lambda x, n, axis: torch.repeat_interleave(x, n, dim=axis))(v_cache, rep, axis=1)
        scores = torch.einsum("bhqd,bhkd->bhqk", q, k) * (Dh ** -0.5)
        p = _softmax(scores, axis=-1)
        o = torch.einsum("bhqk,bhkd->bhqd", p, v)
        return (lambda x, *d: x.permute(*d))(o, 0, 2, 1, 3).reshape(B, Sq, Hq * Dh) @ wo

    a = _A_ref(A_x, A_k_cache, A_v_cache, A_wq, A_wo)
    b = _B_ref(B_x, B_k_cache, B_v_cache, B_wq, B_wo)
    return torch.concatenate([a, b], axis=-1)
```

```python
import re

REG_RE = re.compile(r'^(-|\|)?([vas])(?:(\d+)|\[(\d+):(\d+)\])\|?$')

def regs_of(tok):
    tok = tok.strip()
    if tok in ('vcc',): return ['vcc']
    if tok in ('exec',): return ['exec']
    if tok in ('m0',): return ['m0']
    m = REG_RE.match(tok)
    if not m: return []
    f = m.group(2)
    if m.group(3) is not None: return [f + m.group(3)]
    return [f + str(i) for i in range(int(m.group(4)), int(m.group(5)) + 1)]

def split_ops(s):
    ops, depth, cur = [], 0, ''
    for ch in s:
        if ch in '[(': depth += 1
        elif ch in '])': depth -= 1
        if ch == ',' and depth == 0:
            ops.append(cur.strip()); cur = ''
        else: cur += ch
    if cur.strip(): ops.append(cur.strip())
    return ops

TRANS = ('v_exp_f32', 'v_log_f32', 'v_rcp_f32', 'v_rsq_f32', 'v_sqrt_f32', 'v_sin_f32', 'v_cos_f32')

def base(mn): return re.sub(r'_e(32|64)$', '', mn)

class Ins:
    __slots__ = ('text', 'mn', 'kind', 'rd', 'wr', 'A', 'B', 'C', 'D', 'data', 'nop')
    def __init__(self, text):
        self.text = text
        t = text.strip()
        self.rd, self.wr = set(), set()
        self.A = self.B = self.C = self.D = frozenset(); self.data = frozenset(); self.nop = 0
        if t.endswith(':') or t.startswith('.') or t.startswith(';') or not t:
            self.mn = ''; self.kind = 'label'; return
        parts = t.split(None, 1)
        mn = parts[0]; self.mn = mn
        rest = parts[1] if len(parts) > 1 else ''
        ops = split_ops(rest)
        opsr = [o.split()[0] for o in ops]
        mods = ' '.join(' '.join(o.split()[1:]) for o in ops)
        R = lambda i: regs_of(opsr[i]) if i < len(opsr) else []
        if mn.startswith('v_mfma'):
            self.kind = 'mfma'
            self.D, self.A, self.B, self.C = map(lambda i: frozenset(R(i)), range(4))
            self.wr = set(self.D); self.rd = set(self.A) | set(self.B) | set(self.C)
        elif mn.startswith('ds_read') or mn.startswith('ds_bpermute'):
            self.kind = 'dsr'; self.wr = set(R(0)); self.rd = set(R(1)) | set(R(2))
        elif mn.startswith('ds_write'):
            self.kind = 'dsw'; self.rd = set(R(0)) | set(R(1)) | set(R(2)); self.data = frozenset(R(1) + R(2))
        elif mn.startswith('buffer_load') or mn.startswith('global_load'):
            if ' lds' in ' ' + mods or mn.startswith('global_load_lds'):
                self.kind = 'dma'
                for i in range(len(opsr)): self.rd |= set(R(i))
                self.rd.add('m0')
            else:
                self.kind = 'vld'; self.wr = set(R(0))
                for i in range(1, len(opsr)): self.rd |= set(R(i))
        elif mn.startswith('buffer_store'):
            self.kind = 'vst'; self.data = frozenset(R(0))
            for i in range(len(opsr)): self.rd |= set(R(i))
        elif mn.startswith('global_store'):
            self.kind = 'vst'; self.data = frozenset(R(1))
            for i in range(len(opsr)): self.rd |= set(R(i))
        elif mn.startswith('buffer_atomic'):
            self.kind = 'vat'; self.data = frozenset(R(0))
            for i in range(len(opsr)): self.rd |= set(R(i))
            if 'sc0' in mods: self.wr = set(R(0))
        elif mn.startswith('buffer_wbl2') or mn.startswith('buffer_inv'):
            self.kind = 'vmisc'
        elif mn == 's_nop':
            self.kind = 'nop'; self.nop = int(opsr[0], 0) + 1
        elif mn in ('s_waitcnt', 's_barrier', 's_endpgm', 's_setprio', 's_sleep') or mn.startswith('s_cbranch') or mn == 's_branch':
            self.kind = 'ctl'
        elif mn.startswith('s_load') or mn.startswith('s_mem') or mn.startswith('s_buffer_load'):
            self.kind = 'smem'; self.wr = set(R(0))
            for i in range(1, len(opsr)): self.rd |= set(R(i))
        elif mn.startswith('s_'):
            self.kind = 'salu'
            if mn.startswith('s_cmp') or mn.startswith('s_bitcmp'):
                for i in range(len(opsr)): self.rd |= set(R(i))
            else:
                self.wr = set(R(0))
                for i in range(1, len(opsr)): self.rd |= set(R(i))
                if 'saveexec' in mn: self.wr.add('exec')
        elif mn.startswith('v_'):
            self.kind = 'valu'
            self.wr = set(R(0))
            for i in range(1, len(opsr)): self.rd |= set(R(i))
            if mn.startswith('v_permlane') and 'swap' in mn:
                self.wr |= set(R(1)); self.rd |= set(R(0))
            if mn.startswith('v_fmac') or mn.startswith('v_pk_fmac') or mn.startswith('v_dot2c'):
                self.rd |= set(R(0))
            if mn.startswith('v_add_co') or mn.startswith('v_addc_co') or mn.startswith('v_sub_co'):
                self.wr |= set(R(1))
        else:
            raise ValueError('unknown instr: ' + text)

class Prog:
    def __init__(self):
        self.ins = []
        self.vm_seq = 0; self.vm_done = 0; self.vm_pend = {}
        self.lg_seq = 0; self.lg_done = 0; self.lg_pend = {}
    def _wait(self, vm=None, lg=None):
        parts = []
        if vm is not None and vm > self.vm_done:
            n = min(self.vm_seq - vm, 63); parts.append(f'vmcnt({n})'); self.vm_done = self.vm_seq - n
        if lg is not None and lg > self.lg_done:
            n = min(self.lg_seq - lg, 15); parts.append(f'lgkmcnt({n})'); self.lg_done = self.lg_seq - n
        if parts: self.ins.append(Ins('  s_waitcnt ' + ' '.join(parts)))
    def wait_vm(self, tok): self._wait(vm=tok)
    def wait_lg(self, tok): self._wait(lg=tok)
    def wait_all(self, vm=True, lg=True, force=False):
        if force:
            parts = []
            if vm: parts.append('vmcnt(0)'); self.vm_done = self.vm_seq
            if lg: parts.append('lgkmcnt(0)'); self.lg_done = self.lg_seq
            self.ins.append(Ins('  s_waitcnt ' + ' '.join(parts)))
        else:
            self._wait(self.vm_seq if vm else None, self.lg_seq if lg else None)
    def forget(self):
        self.vm_done = self.vm_seq; self.lg_done = self.lg_seq
    def __call__(self, text):
        for line in text.split('\n'):
            if line.strip(): self.emit1('  ' + line.strip() if not line.strip().endswith(':') else line.strip())
        return self.last
    def emit1(self, text):
        I = Ins(text)
        touched = I.rd | I.wr
        vm = max([self.vm_pend.get(r, 0) for r in touched] + [0])
        lg = max([self.lg_pend.get(r, 0) for r in touched] + [0])
        if I.kind == 'dsr':
            lg = max([self.lg_pend.get(r, 0) for r in I.rd] + [0])
        if I.kind == 'vld':
            vm = max([self.vm_pend.get(r, 0) for r in I.rd] + [0])
        self._wait(vm if vm else None, lg if lg else None)
        self.ins.append(I)
        self.last = None
        if I.kind in ('vld', 'dma', 'vst', 'vat', 'vmisc'):
            self.vm_seq += 1
            assert self.vm_seq - self.vm_done <= 63 or True
            for r in I.wr: self.vm_pend[r] = self.vm_seq
            self.last = self.vm_seq
        elif I.kind in ('dsr', 'dsw'):
            self.lg_seq += 1
            for r in I.wr: self.lg_pend[r] = self.lg_seq
            self.last = self.lg_seq
    def finalize(self):
        out = []
        def need(p, c):
            n = 0
            if p.kind == 'valu':
                vw = {r for r in p.wr if r[0] in 'va' and r != 'vcc'}
                sw = {r for r in p.wr if r[0] == 's' or r == 'vcc'}
                if c.kind == 'mfma' and vw & c.rd: n = max(n, 2)
                if c.kind == 'valu':
                    if base(p.mn) in TRANS and base(c.mn) not in TRANS and vw & (c.rd): n = max(n, 1)
                    if c.mn.startswith('v_permlane') and vw & c.rd: n = max(n, 2)
                    if (c.mn.startswith('v_readfirstlane') or c.mn.startswith('v_readlane')) and vw & c.rd: n = max(n, 1)
                    if 'dpp' in c.text and vw & c.rd: n = max(n, 2)
                    if sw & c.rd: n = max(n, 2)
                    if (c.mn.startswith('v_readlane') or c.mn.startswith('v_writelane')) and sw & c.rd: n = max(n, 4)
                if c.kind in ('vld', 'dma', 'vst', 'vat') and sw & c.rd: n = max(n, 5)
                if c.kind in ('salu', 'ctl') and sw & c.rd: n = max(n, 1)
                if base(p.mn) in TRANS and c.kind in ('dsw', 'vst', 'dsr', 'vld', 'dma') and vw & c.rd: n = max(n, 1)
            if p.kind == 'mfma':
                if c.kind == 'mfma':
                    if p.D & (c.A | c.B): n = max(n, 8)
                    if p.D & c.C and p.D != c.C: n = max(n, 6)
                    if p.D & c.D and p.D != c.D: n = max(n, 6)
                elif c.kind in ('valu', 'dsr', 'dsw', 'vld', 'vst', 'dma', 'vat'):
                    if p.D & (c.rd | c.wr): n = max(n, 8)
                    if c.kind == 'valu' and p.C & c.wr: n = max(n, 3)
            if p.kind == 'salu' and 'm0' in p.wr and c.kind == 'dma': n = max(n, 1)
            if p.kind in ('vst', 'vat') and len(p.data) >= 3 and p.data & c.wr:
                n = max(n, 2 if c.kind == 'valu' else 1)
            return n
        for c in self.ins:
            if c.kind not in ('label', 'nop'):
                dist = 0; req = 0
                for p in reversed(out):
                    if p.kind == 'label': continue
                    if dist >= 8: break
                    req = max(req, need(p, c) - dist)
                    dist += p.nop if p.kind == 'nop' else 1
                if req > 0: out.append(Ins(f'  s_nop {req - 1}'))
            out.append(c)
        self.ins = out
    def text(self):
        return '\n'.join(i.text for i in self.ins) + '\n'

def interleave(mf, fillers, start=0, end=None):
    end = len(mf) if end is None else end
    n = end - start
    slots = [[] for _ in mf]
    k = len(fillers)
    for i, f in enumerate(fillers):
        pos = start + min(n - 1, (i * n) // max(k, 1))
        slots[pos].append(f)
    return slots
```

```python
import sys, struct, math
from asmlib import *
NAME = "concat_heads__gqa_block_cached__gqa_block_cached__near_ridge"

def vr(b, n=4): return f"v[{b}:{b+n-1}]"
def ar(b, n=4): return f"a[{b}:{b+n-1}]"
def f2u(x): return struct.unpack('<I', struct.pack('<f', x))[0]

def KSLOT(s): return (s % 4) * 16384
VWIN = 98304
def VSLOT(s): return VWIN + ((s + 2) % 4) * 16384
EX = 65536; XB = 32768; QX = 65536
STATS = 32768; FLAGS = 32768 + 12288; OX4 = 49152
UBUF = [65536, 0, 32768, 98304, 131072]
PART_BYTES = 92160
STAMP_OFF = 200 << 20

KRD = 4; VRD = 8; KDMA = 16; VDMA = 20; LIN = 22
NEGM = 28; PREG = 48; SREG = 56; OREG = 96
def S(j, kt): return SREG + (j * 2 + kt) * 4
def O(t, j): return OREG + (t * 5 + j) * 4
def QB(ds, j): return (ds * 5 + j) * 4
def KA(st, kt, ds): return 80 + st * 32 + (kt * 4 + ds) * 4
def VA(st, t): return 144 + st * 32 + t * 4
LACC = 208; ONES = 228
QA = 28
WQV = 60
RAW = [68, 176, 192, 208, 224, 240]
XRD = 84
XD = 88
def QACC(j, qt): return 96 + (j * 5 + qt) * 4
def XF(st, qt): return 80 + st * 20 + qt * 4
MF = "v_mfma_f32_16x16x32_bf16"

class Gen:
    def __init__(self, kvflag=" nt", stamps=False, dump=None):
        self.p = Prog(); self.kvflag = kvflag; self.stamps = stamps; self.nst = 0; self.dump = dump
        self.tokK = {}; self.tokV = {}; self.tokU = {}
    def stamp(self):
        if not self.stamps: return
        p = self.p
        assert self.nst < 20
        p.wait_all(vm=False, lg=True)
        p(f"s_memrealtime s[{60+2*self.nst}:{61+2*self.nst}]")
        p("s_waitcnt lgkmcnt(0)")
        self.nst += 1
    def run(self, items):
        for it in items:
            if callable(it): it()
            elif isinstance(it, (list, tuple)): self.run(it)
            else: self.p(it)
    def mix(self, mf, *fillsets):
        slots = [[] for _ in mf]
        for fl, st, en in fillsets:
            sl = interleave(mf, fl, st, en)
            for i in range(len(mf)): slots[i] += sl[i]
        for m, sl in zip(mf, slots):
            self.p(m); self.run(sl)
    def dmaK(self, s):
        out = []
        def first(): self.p(f"s_add_u32 m0, s43, {KSLOT(s)}"); self.p(f"s_mov_b32 s51, {s*16384}")
        for n in range(4):
            def f(n=n):
                if n == 0: first()
                self.tokK[s] = self.p(f"buffer_load_dwordx4 v{KDMA+n}, s[8:11], s51 offen offset:{n*1024}{self.kvflag} lds")
            out.append(f)
        return out
    def dmaV(self, s):
        out = []
        def first(): self.p(f"s_add_u32 m0, s43, {VSLOT(s)}"); self.p(f"s_mov_b32 s51, {s*16384}")
        for n in range(4):
            def f(n=n):
                if n == 0: first()
                self.tokV[s] = self.p(f"buffer_load_dwordx4 v{VDMA+(n&1)}, s[12:15], s51 offen offset:{n*1024}{self.kvflag} lds")
            out.append(f)
        return out
    def dmaU(self, u):
        out = []
        buf = UBUF[u % 5]
        for n in range(8):
            def f(n=n):
                if n % 4 == 0: self.p(f"s_add_u32 m0, s53, {buf + n*1024}")
                if u < 8:
                    g, k = u >> 1, u & 1
                    so = k * 128 * 1152 + g * 256 + n * 4608 - 1024 * (n & 3); v = 24 + (n & 1)
                else:
                    so = 1024 + n * 9216 - 1024 * (n & 3); v = 26
                self.p(f"s_mov_b32 s54, {so}")
                self.tokU[u] = self.p(f"buffer_load_dwordx4 v{v}, s[20:23], s54 offen offset:{(n&3)*1024} lds")
            out.append(f)
        return out
    def rdK(self, s):
        st = s & 1
        return [f"ds_read_b128 {ar(KA(st,kt,ds))}, v{KRD+ds} offset:{KSLOT(s)+kt*4096}" for kt in range(2) for ds in range(4)]
    def rdV(self, s):
        st = s & 1
        return [f"ds_read_b64_tr_b16 {ar(VA(st,t)+2*hh,2)}, v{VRD+t} offset:{VSLOT(s)-VWIN+hh*4096}" for t in range(8) for hh in range(2)]
    def qk(self, s, j, cinit):
        st = s & 1; out = []
        for ds in range(4):
            for kt in range(2):
                c = cinit if ds == 0 else vr(S(j, kt))
                out.append(f"{MF} {vr(S(j,kt))}, {ar(KA(st,kt,ds))}, {ar(QB(ds,j))}, {c}")
        return out
    def pv(self, s, j):
        st = s & 1; P = vr(PREG + ((5 * s + j) & 1) * 4); out = []
        out.append(f"{MF} {ar(LACC+4*j)}, {ar(ONES)}, {P}, {'0' if s == 0 else ar(LACC+4*j)}")
        for t in range(8):
            out.append(f"{MF} {vr(O(t,j))}, {ar(VA(st,t))}, {P}, {'0' if s == 0 else vr(O(t,j))}")
        return out
    def expo(self, j, pbuf):
        P = PREG + pbuf * 4
        b0, b1 = S(j, 0), S(j, 1)
        res = [f"v_exp_f32 v{b0}, v{b0}", f"v_exp_f32 v{b0+1}, v{b0+1}", f"v_exp_f32 v{b0+2}, v{b0+2}",
               f"v_cvt_pk_bf16_f32 v{P}, v{b0}, v{b0+1}", f"v_exp_f32 v{b0+3}, v{b0+3}",
               f"v_exp_f32 v{b1}, v{b1}", f"v_cvt_pk_bf16_f32 v{P+1}, v{b0+2}, v{b0+3}",
               f"v_exp_f32 v{b1+1}, v{b1+1}", f"v_exp_f32 v{b1+2}, v{b1+2}",
               f"v_cvt_pk_bf16_f32 v{P+2}, v{b1}, v{b1+1}", f"v_exp_f32 v{b1+3}, v{b1+3}",
               f"v_cvt_pk_bf16_f32 v{P+3}, v{b1+2}, v{b1+3}"]
        return res

    def prologue(self):
        p = self.p
        p("s_cmp_ge_u32 s2, 256"); p("s_cbranch_scc1 L_end")
        if self.stamps:
            p("s_memrealtime s[60:61]"); self.nst = 1
        p("""s_and_b32 s38, s2, 7
        s_lshr_b32 s39, s2, 3
        s_and_b32 s36, s39, 7
        s_lshr_b32 s39, s39, 3
        s_lshl_b32 s38, s38, 2
        s_add_u32 s38, s38, s39
        s_lshr_b32 s35, s38, 4
        s_and_b32 s37, s38, 15
        s_mul_i32 s38, s35, 40
        s_add_u32 s38, s0, s38
        s_addc_u32 s39, s1, 0
        s_load_dwordx8 s[44:51], s[38:39], 0
        s_load_dwordx2 s[52:53], s[38:39], 32
        s_load_dwordx2 s[54:55], s[0:1], 96
        v_lshrrev_b32 v1, 6, v0
        v_and_b32 v0, 63, v0
        v_readfirstlane_b32 s32, v1
        v_and_b32 v1, 15, v0
        v_lshrrev_b32 v2, 4, v0
        s_and_b32 s33, s32, 1
        s_lshr_b32 s34, s32, 1""")
        p(f"""s_lshl_b32 s38, s33, 2
        v_add_u32 v3, s38, v2
        v_and_b32 v23, 7, v0
        v_xor_b32 v3, v3, v23
        v_lshlrev_b32 v3, 4, v3
        v_lshrrev_b32 v23, 3, v0
        v_mul_u32_u24 v23, 1152, v23
        v_add_u32 v{XD}, v3, v23""")
        p(f"v_lshlrev_b32 v3, 16, v2")
        p(f"v_lshl_add_u32 v{WQV}, v1, 3, v3")
        for i in range(1, 8): p(f"v_add_u32 v{WQV+i}, {i*8192}, v{WQV}")
        p("s_waitcnt lgkmcnt(0)")
        p(f"""s_mul_i32 s38, s36, 92160
        s_add_u32 s4, s44, s38
        s_addc_u32 s5, s45, 0
        s_mov_b32 s6, 92160
        s_mov_b32 s7, 0x20000
        s_lshl_b32 s38, s37, 9
        s_lshl_b32 s39, s33, 8
        s_add_u32 s38, s38, s39
        s_lshl_b32 s39, s34, 7
        s_add_u32 s38, s38, s39
        s_add_u32 s16, s50, s38
        s_addc_u32 s17, s51, 0
        s_sub_u32 s18, {576*8192}, s38
        s_mov_b32 s19, 0x20000
        s_lshl_b32 s38, s36, 4
        s_add_u32 s38, s38, s37
        s_lshl_b32 s38, s38, 18
        s_add_u32 s8, s46, s38
        s_addc_u32 s9, s47, 0
        s_mov_b32 s10, 262144
        s_mov_b32 s11, 0x20000
        s_add_u32 s12, s48, s38
        s_addc_u32 s13, s49, 0
        s_mov_b32 s14, 262144
        s_mov_b32 s15, 0x20000
        s_mul_i32 s38, s37, {256*1152}
        s_add_u32 s20, s52, s38
        s_addc_u32 s21, s53, 0
        s_mov_b32 s22, {256*1152}
        s_mov_b32 s23, 0x20000
        s_lshl_b32 s38, s35, 3
        s_add_u32 s38, s38, s36
        s_lshl_b32 s38, s38, 4
        s_add_u32 s38, s38, s37
        s_mul_i32 s38, s38, {PART_BYTES}
        s_add_u32 s24, s54, s38
        s_addc_u32 s25, s55, 0
        s_mov_b32 s26, {PART_BYTES}
        s_mov_b32 s27, 0x20000
        s_add_u32 s28, s54, {STAMP_OFF}
        s_addc_u32 s29, s55, 0
        s_mov_b32 s30, {48<<20}
        s_mov_b32 s31, 0x20000""")
        p(f"""s_lshl_b32 s38, s32, 10
        s_add_u32 s44, s38, {XB}
        s_add_u32 s45, s38, {XB+4096}
        s_mul_i32 s47, s32, 9216
        s_add_u32 s48, s47, {4*9216}
        s_mul_i32 s38, s34, 10240
        s_lshl_b32 s39, s33, 10
        s_add_u32 s46, s38, s39
        s_add_u32 s46, s46, {XB+8192}
        s_mul_i32 s49, s33, 9216
        s_lshl_b32 s39, s34, 7
        s_add_u32 s49, s49, s39
        s_add_u32 s49, s49, {8*9216}
        s_lshl_b32 s43, s32, 12
        s_lshl_b32 s53, s32, 13
        s_mov_b32 s40, 0x05040100
        s_mov_b32 s41, 0x07060302""")
    def dmaX(self, kc):
        p = self.p
        p(f"s_add_u32 m0, s44, {kc*(10240-128)}")
        p(f"buffer_load_dwordx4 v{XD}, s[4:7], s47 offen offset:{kc*128} lds")
        p(f"s_add_u32 m0, s45, {kc*(10240-128)}")
        t = p(f"buffer_load_dwordx4 v{XD}, s[4:7], s48 offen offset:{kc*128} lds")
        if kc % 2 == 0:
            m = kc // 2
            if m < 4:
                p(f"s_add_u32 m0, s46, {m*(20480-256)}")
                t = p(f"buffer_load_dwordx4 v{XD}, s[4:7], s49 offen offset:{m*256} lds")
            else:
                p(f"s_lshl_b32 s56, s33, 10")
                p(f"s_mul_i32 s57, s33, 9216")
                p(f"s_add_u32 s57, s57, {8*9216}")
                p(f"s_add_u32 m0, s56, {XB + 8192 + 81920 - 1024}")
                t = p(f"buffer_load_dwordx4 v{XD}, s[4:7], s57 offen offset:1024 lds")
        return t
    def ldWQ(self, ks):
        rb = RAW[ks % len(RAW)]
        out = []
        for i in range(8):
            def f(i=i):
                if i == 0: self.p(f"s_mov_b32 s50, {ks*262144}")
                self.p(f"buffer_load_dwordx2 {vr(rb+2*i,2)}, v{WQV+i}, s[16:19], s50 offen")
            out.append(f)
        return out
    def permWQ(self, ks):
        rb = RAW[ks % len(RAW)]; A = QA + (ks & 1) * 16; out = []
        for j in range(4):
            for u in range(4):
                out.append(f"v_perm_b32 v{A+4*j+u}, v{rb+2*(2*u+1)+(j>>1)}, v{rb+2*(2*u)+(j>>1)}, s{40+(j&1)}")
        return out
    def rdX(self, ks):
        kc, e = ks >> 1, ks & 1
        hi = 1 if kc >= 5 else 0
        return [f"ds_read_b128 {ar(XF(ks&1,qt))}, v{XRD+2*hi+e} offset:{(kc-5*hi)*10240+qt*2048}" for qt in range(5)]

    def addr_setup(self):
        p = self.p
        p(f"""v_lshlrev_b32 v3, 8, v2
        v_add_u32 v3, s43, v3
        v_xor_b32 v23, v1, v2""")
        for n in range(4):
            p(f"v_xor_b32 v24, {4*n}, v23"); p(f"v_lshl_add_u32 v{KDMA+n}, v24, 4, v3")
        p(f"v_lshlrev_b32 v23, 1, v2"); p(f"v_xor_b32 v23, v1, v23")
        for n in range(2):
            p(f"v_xor_b32 v24, {8*n}, v23"); p(f"v_lshl_add_u32 v{VDMA+n}, v24, 4, v3")
    def addr_setup2(self):
        p = self.p
        p(f"v_lshlrev_b32 v{LIN}, 4, v0")
        p(f"""v_lshrrev_b32 v3, 1, v1
        v_xor_b32 v3, v3, v2
        v_lshlrev_b32 v23, 7, v1
        v_add_u32 v23, {XB}, v23
        v_lshl_add_u32 v{XRD}, v3, 4, v23
        v_xor_b32 v3, 4, v3
        v_lshl_add_u32 v{XRD+1}, v3, 4, v23
        v_add_u32 v{XRD+2}, 51200, v{XRD}
        v_add_u32 v{XRD+3}, 51200, v{XRD+1}""")
        p(f"""s_lshl_b32 s38, s34, 13
        v_lshlrev_b32 v23, 8, v1
        v_add_u32 v23, s38, v23
        v_lshlrev_b32 v3, 1, v2
        v_xor_b32 v3, v3, v1""")
        for ds in range(4):
            p(f"v_xor_b32 v24, {8*(ds>>1)+(ds&1)}, v3"); p(f"v_lshl_add_u32 v{KRD+ds}, v24, 4, v23")
        p(f"""v_lshrrev_b32 v3, 2, v0
        v_lshlrev_b32 v23, 8, v3
        v_add_u32 v23, s38, v23
        v_and_b32 v24, 3, v0
        v_lshl_add_u32 v23, v24, 3, v23
        v_add_u32 v23, {VWIN}, v23
        v_and_b32 v3, 7, v3
        s_lshl_b32 s39, s34, 2
        v_xor_b32 v3, s39, v3""")
        for t in range(8):
            p(f"v_xor_b32 v24, {t}, v3"); p(f"v_lshl_add_u32 v{VRD+t}, v24, 5, v23")
        p(f"v_mov_b32 v3, 0x3f803f80")
        for i in range(4): p(f"v_accvgpr_write_b32 a{ONES+i}, v3")

    def qproj(self):
        p = self.p; NB = len(RAW)
        tx = {}
        for kc in range(9): tx[kc] = self.dmaX(kc)
        for ks in range(4): self.run(self.ldWQ(ks))
        self.addr_setup()
        self.run(self.dmaK(0)); self.run(self.dmaV(0))
        self.addr_setup2()
        p.wait_vm(tx[8])
        p("s_barrier")
        self.stamp()
        for ks in range(4, NB): self.run(self.ldWQ(ks))
        self.run(self.rdX(0)); self.run(self.permWQ(0))
        self.run(self.ldWQ(NB))
        for ks in range(18):
            A = QA + (ks & 1) * 16
            mf = [f"{MF} {vr(QACC(j,qt))}, {vr(A+4*j)}, {ar(XF(ks&1,qt))}, {'0' if ks == 0 else vr(QACC(j,qt))}" for j in range(4) for qt in range(5)]
            fs = []
            if ks + 1 < 18:
                fs.append((self.rdX(ks + 1), 0, 10))
                fs.append((self.permWQ(ks + 1), 0, 12))
                if ks + 1 + NB < 18: fs.append((self.ldWQ(ks + 1 + NB), 12, 20))
            extra = []
            if ks == 2: extra = self.dmaK(1)
            if ks == 4: extra = self.dmaV(1)
            if ks == 9: extra = self.dmaK(2)
            if ks == 11: extra = self.dmaK(3)
            if extra: fs.append((extra, 2, 18))
            self.mix(mf, *fs)
            if ks == 8:
                p.wait_all(vm=False); p("s_barrier")
        self.stamp()
        c = math.log2(math.e) / math.sqrt(128.0)
        p(f"s_mov_b32 s38, {f2u(c)}"); p(f"s_mov_b32 s39, {f2u(c)}")
        p("s_barrier")
        self.run(self.dmaV(3))
        p(f"s_mul_i32 s42, s32, 10240"); p(f"s_add_u32 s42, s42, {QX}"); p(f"v_add_u32 v3, s42, v{LIN}")
        T = 28
        for qt in range(5):
            for j in range(4):
                for hh in range(2):
                    b = QACC(j, qt) + 2 * hh
                    p(f"v_pk_mul_f32 {vr(b,2)}, {vr(b,2)}, s[38:39]")
            for u in range(2):
                t = T + ((qt * 2 + u) % 4) * 4
                p(f"v_cvt_pk_bf16_f32 v{t}, v{QACC(0,qt)+2*u}, v{QACC(1,qt)+2*u}")
                p(f"v_cvt_pk_bf16_f32 v{t+1}, v{QACC(2,qt)+2*u}, v{QACC(3,qt)+2*u}")
                p(f"v_cvt_pk_bf16_f32 v{t+2}, v{QACC(0,qt)+2*u+1}, v{QACC(1,qt)+2*u+1}")
                p(f"v_cvt_pk_bf16_f32 v{t+3}, v{QACC(2,qt)+2*u+1}, v{QACC(3,qt)+2*u+1}")
                p(f"ds_write_b128 v3, {vr(t)} offset:{(u*5+qt)*1024}")
    def attention(self):
        p = self.p
        p(f"s_mul_i32 s42, s33, 10240"); p(f"s_add_u32 s42, s42, {QX}")
        p(f"v_add_u32 v3, s42, v{LIN}")
        p.wait_vm(max(self.tokK[1], self.tokV[0]))
        p.wait_all(vm=False); p("s_barrier")
        for ds in range(4):
            for j in range(5):
                p(f"ds_read_b128 {ar(QB(ds,j))}, v3 offset:{(ds>>1)*20480 + ((ds&1)*5+j)*1024}")
        self.run(self.rdK(0))
        mf = []
        for j in range(5): mf += self.qk(0, j, "0")
        self.mix(mf, (self.rdK(1) + self.rdV(0), 4, 36))
        for j in range(5):
            a, b = S(j, 0), S(j, 1); n = NEGM + 4 * j
            p(f"v_max3_f32 v{n}, v{a}, v{a+1}, v{a+2}")
            p(f"v_max3_f32 v{n+1}, v{a+3}, v{b}, v{b+1}")
            p(f"v_max3_f32 v{n}, v{n}, v{b+2}, v{b+3}")
            p(f"v_max_f32 v{n}, v{n}, v{n+1}")
        for sw in ("v_permlane32_swap_b32", "v_permlane16_swap_b32"):
            for j in range(5):
                n = NEGM + 4 * j
                p(f"v_mov_b32 v{n+1}, v{n}")
            for j in range(5):
                n = NEGM + 4 * j
                p(f"{sw} v{n}, v{n+1}")
            for j in range(5):
                n = NEGM + 4 * j
                p(f"v_max_f32 v{n}, v{n}, v{n+1}")
        for j in range(5):
            n = NEGM + 4 * j
            p(f"v_sub_f32 v{n}, 0, v{n}")
            for i in range(1, 4): p(f"v_mov_b32 v{n+i}, v{n}")
        for j in range(5):
            for kt in range(2):
                for r in range(4): p(f"v_add_f32 v{S(j,kt)+r}, v{S(j,kt)+r}, v{NEGM+4*j}")
        self.run(self.expo(0, 0))
        p(f"""v_lshrrev_b32 v2, 4, v0
        v_and_b32 v1, 15, v0
        s_lshl_b32 s38, s32, 5
        v_add_u32 v3, s38, v2
        v_mul_u32_u24 v3, 1152, v3
        v_lshlrev_b32 v23, 1, v2
        v_xor_b32 v23, v1, v23
        v_lshl_add_u32 v24, v23, 4, v3
        v_xor_b32 v23, 8, v23
        v_lshl_add_u32 v25, v23, 4, v3
        s_lshl_b32 s38, s32, 6
        v_lshrrev_b32 v3, 3, v0
        v_add_u32 v3, s38, v3
        v_mul_u32_u24 v3, 1152, v3
        v_bfe_u32 v23, v0, 1, 2
        v_xor_b32 v23, v23, v2
        v_lshl_add_u32 v3, v23, 5, v3
        v_and_b32 v23, 1, v0
        v_lshl_add_u32 v26, v23, 4, v3""")
        self.stamp()
        for s in range(16):
            toks = []
            if s + 2 <= 15: toks.append(self.tokK[s + 2])
            if s + 1 <= 15: toks.append(self.tokV[s + 1])
            if toks: p.wait_vm(max(toks))
            p.wait_all(vm=False)
            p("s_barrier")
            if s in (8, 15): self.stamp()
            dm = []
            if s == 0: dm += self.dmaV(2) + self.dmaK(4)
            if s + 5 <= 15: dm += self.dmaK(s + 5)
            if s + 4 <= 15: dm += self.dmaV(s + 4)
            if s == 12: dm += self.dmaU(0)
            if s == 13: dm += self.dmaU(1)
            rd = []
            if s + 2 <= 15: rd += self.rdK(s + 2)
            if s + 1 <= 15: rd += self.rdV(s + 1)
            for j in range(5):
                mf = []
                q = self.qk(s + 1, j, vr(NEGM + 4 * j)) if s + 1 <= 15 else []
                v = self.pv(s, j)
                mf = v + q
                fs = []
                nb = (5 * s + j + 1) & 1
                if j < 4: fs.append((self.expo(j + 1, nb), 0, len(mf)))
                elif s + 1 <= 15: fs.append((self.expo(0, nb), 0, len(mf)))
                if j < 4:
                    fs.append((rd[j * len(rd) // 4:(j + 1) * len(rd) // 4], 1, len(mf)))
                    fs.append((dm[j * len(dm) // 4:(j + 1) * len(dm) // 4], 0, len(mf) - 1))
                self.mix(mf, *fs)
        self.stamp()

    def exchange(self):
        p = self.p
        p(f"""s_xor_b32 s38, s32, 2
        s_lshl_b32 s39, s38, 14
        s_add_u32 s39, s39, {VWIN}
        v_add_u32 v1, s39, v{LIN}
        s_lshl_b32 s39, s32, 14
        s_add_u32 s39, s39, {VWIN}
        v_add_u32 v2, s39, v{LIN}
        s_lshl_b32 s39, s38, 12
        v_add_u32 v3, s39, v{LIN}
        s_lshl_b32 s39, s32, 12
        v_add_u32 v23, s39, v{LIN}""")
        for j in range(5):
            for tt in range(4):
                if j < 4: p(f"ds_write_b128 v1, {vr(O(4+tt,j))} offset:{(tt*4+j)*1024}")
                else: p(f"ds_write_b128 v3, {vr(O(4+tt,j))} offset:{OX4+tt*1024}")
        T = SREG
        for j in range(5):
            p(f"v_mov_b32 v{T+j}, v{NEGM+4*j}")
            p(f"v_accvgpr_read_b32 v{T+5+j}, a{LACC+4*j}")
        for k in range(3):
            p(f"ds_write_b128 v3, {vr(T+4*k)} offset:{STATS+k*1024}")
        p.wait_all(vm=False); p("s_barrier")
        U = SREG + 12
        for k in range(3):
            p(f"ds_read_b128 {vr(U+4*k)}, v23 offset:{STATS+k*1024}")
        for j in range(5):
            for tt in range(4):
                if j < 4: p(f"ds_read_b128 {vr(O(4+tt,j))}, v2 offset:{(tt*4+j)*1024}")
                else: p(f"ds_read_b128 {vr(O(4+tt,j))}, v23 offset:{OX4+tt*1024}")
        for j in range(5):
            n = NEGM + 4 * j
            p(f"v_min_f32 v{n+2}, v{T+j}, v{U+j}")
            p(f"v_sub_f32 v{n}, v{n+2}, v{T+j}")
            p(f"v_sub_f32 v{n+1}, v{n+2}, v{U+j}")
            p(f"v_exp_f32 v{n}, v{n}")
            p(f"v_exp_f32 v{n+1}, v{n+1}")
        for j in range(5):
            n = NEGM + 4 * j
            p(f"v_mul_f32 v{n+2}, v{n}, v{T+5+j}")
            p(f"v_fmac_f32 v{n+2}, v{n+1}, v{U+5+j}")
            p(f"v_rcp_f32 v{n+2}, v{n+2}")
        for j in range(5):
            n = NEGM + 4 * j
            p(f"v_mul_f32 v{n}, v{n}, v{n+2}")
            p(f"v_mul_f32 v{n+1}, v{n+1}, v{n+2}")
        for j in range(5):
            n = NEGM + 4 * j
            for tt in range(4):
                for hh in range(2):
                    a = O(tt, j) + 2 * hh; b = O(4 + tt, j) + 2 * hh
                    p(f"v_pk_mul_f32 {vr(b,2)}, {vr(b,2)}, {vr(n,2)} op_sel:[0,1] op_sel_hi:[1,1]")
                    p(f"v_pk_fma_f32 {vr(a,2)}, {vr(a,2)}, {vr(n,2)}, {vr(b,2)} op_sel:[0,0,0] op_sel_hi:[1,0,1]")
            for sl in range(2):
                t = SREG + ((j * 2 + sl) % 4) * 4 + 24
                a, b = O(2 * sl, j), O(2 * sl + 1, j)
                p(f"v_cvt_pk_bf16_f32 v{t}, v{a}, v{a+1}")
                p(f"v_cvt_pk_bf16_f32 v{t+1}, v{a+2}, v{a+3}")
                p(f"v_cvt_pk_bf16_f32 v{t+2}, v{b}, v{b+1}")
                p(f"v_cvt_pk_bf16_f32 v{t+3}, v{b+2}, v{b+3}")
                p(f"ds_write_b128 v2, {vr(t)} offset:{(sl*5+j)*1024}")
        p(f"""v_lshrrev_b32 v3, 2, v0
        v_lshlrev_b32 v23, 8, v3
        v_and_b32 v1, 3, v0
        v_lshl_add_u32 v23, v1, 3, v23
        v_and_b32 v2, 7, v3
        s_lshl_b32 s39, s32, 1
        v_xor_b32 v2, s39, v2
        v_lshl_add_u32 v4, v2, 5, v23
        v_xor_b32 v2, 1, v2
        v_lshl_add_u32 v5, v2, 5, v23
        v_add_u32 v6, 65536, v4
        v_add_u32 v7, 65536, v5
        v_add_u32 v8, 131072, v4
        v_add_u32 v9, 131072, v5
        v_lshlrev_b32 v23, 7, v3
        v_lshl_add_u32 v23, v1, 3, v23
        v_bfe_u32 v2, v0, 3, 2
        v_xor_b32 v2, s32, v2
        v_lshl_add_u32 v10, v2, 5, v23
        v_add_u32 v10, 65536, v10
        v_add_u32 v11, {VWIN}, v{LIN}
        s_mul_i32 s39, s32, 5120
        v_add_u32 v12, s39, v{LIN}
        s_mul_i32 s39, s32, 2560
        v_lshlrev_b32 v13, 3, v0
        v_add_u32 v13, s39, v13""")
        p.wait_vm(self.tokU[0])
        p.wait_all(vm=False); p("s_barrier")
        self.stamp()
    def rdW(self, u):
        buf = UBUF[u % 5]; st = u & 1; out = []
        WA = 160 + st * 32
        if u < 8:
            win = buf >> 16; off = buf & 65535
            for sg in range(4):
                for a in range(2):
                    for hh in range(2):
                        out.append(f"ds_read_b64_tr_b16 {ar(WA+(sg*2+a)*4+2*hh,2)}, v{4+2*win+a} offset:{off+sg*8192+hh*4096}")
        else:
            assert buf >> 16 == 1
            off = buf & 65535
            for sg in range(8):
                for hh in range(2):
                    out.append(f"ds_read_b64_tr_b16 {ar(WA+sg*4+2*hh,2)}, v10 offset:{off+sg*4096+hh*2048}")
        return out
    def oproj(self, stflag=""):
        p = self.p
        def OB(sg, j): return (sg * 5 + j) * 4
        self.run(self.rdW(0))
        self.run(self.dmaU(2))
        for sg in range(8):
            w2 = (sg >> 2) + 2 * ((sg >> 1) & 1)
            for j in range(5):
                p(f"ds_read_b128 {ar(OB(sg,j))}, v11 offset:{w2*16384 + ((sg&1)*5+j)*1024}")
        def ACC(g, a, j): return 96 + (g & 1) * 40 + (a * 5 + j) * 4
        def stores(g):
            out = []
            for j in range(5):
                t = 28 + (j % 4) * 4
                if g < 4:
                    a, b = ACC(g, 0, j), ACC(g, 1, j)
                    out.append([f"v_cvt_pk_bf16_f32 v{t}, v{a}, v{a+1}", f"v_cvt_pk_bf16_f32 v{t+1}, v{a+2}, v{a+3}"])
                    out.append([f"v_cvt_pk_bf16_f32 v{t+2}, v{b}, v{b+1}", f"v_cvt_pk_bf16_f32 v{t+3}, v{b+2}, v{b+3}"])
                    out.append([f"s_mov_b32 s55, {g*20480+j*1024}", f"buffer_store_dwordx4 {vr(t)}, v12, s[24:27], s55 offen{stflag}"])
                else:
                    a = ACC(g, 0, j)
                    out.append([f"v_cvt_pk_bf16_f32 v{t}, v{a}, v{a+1}", f"v_cvt_pk_bf16_f32 v{t+1}, v{a+2}, v{a+3}"])
                    out.append([f"s_mov_b32 s55, {81920+j*512}", f"buffer_store_dwordx2 {vr(t,2)}, v13, s[24:27], s55 offen{stflag}"])
            return out
        for u in range(9):
            if u + 1 <= 8: p.wait_vm(self.tokU[u + 1])
            p.wait_all(vm=False)
            p("s_barrier")
            dm = []
            if u == 0: dm += self.dmaU(3) + self.dmaU(4)
            if u + 5 <= 8: dm += self.dmaU(u + 5)
            WA = 160 + (u & 1) * 32
            g = u >> 1
            mf = []
            if u < 8:
                k = u & 1
                for sg in range(4):
                    for a in range(2):
                        for j in range(5):
                            c = "0" if (k == 0 and sg == 0) else vr(ACC(g, a, j))
                            mf.append(f"{MF} {vr(ACC(g,a,j))}, {ar(WA+(sg*2+a)*4)}, {ar(OB(4*k+sg,j))}, {c}")
            else:
                for sg in range(8):
                    for j in range(5):
                        c = "0" if sg == 0 else vr(ACC(g, 0, j))
                        mf.append(f"{MF} {vr(ACC(g,0,j))}, {ar(WA+sg*4)}, {ar(OB(sg,j))}, {c}")
            fs = []
            if u + 1 <= 8: fs.append((self.rdW(u + 1), 0, 32))
            if dm: fs.append((dm, 0, 38))
            if u >= 2 and u % 2 == 0: fs.append((stores(g - 1), 2, 38))
            self.mix(mf, *fs)
        self.run(stores(4))
        self.stamp()
        p.wait_all(vm=True, lg=True)
        self.stamp()
    def dump_stamps(self):
        if not self.stamps: return
        p = self.p
        p("s_cmp_lg_u32 s32, 0"); p("s_cbranch_scc1 L_end")
        p("s_mul_i32 s38, s2, 160"); p("v_mov_b32 v1, s38")
        p("v_cmp_eq_u32 vcc, 0, v0"); p("s_and_saveexec_b64 s[38:39], vcc")
        for i in range(self.nst):
            p(f"v_mov_b32 v2, s{60+2*i}"); p(f"v_mov_b32 v3, s{61+2*i}")
            p(f"buffer_store_dwordx2 v[2:3], v1, s[28:31], 0 offen offset:{8*i}")
        p.wait_all(force=True)

def reduce_kernel():
    p = Prog()
    p("s_cmp_ge_u32 s2, 400"); p("s_cbranch_scc1 L_rend")
    p("""s_load_dwordx2 s[4:5], s[0:1], 80
    s_load_dwordx2 s[8:9], s[0:1], 96
    v_lshrrev_b32 v1, 6, v0
    v_and_b32 v0, 63, v0
    v_readfirstlane_b32 s12, v1
    s_mul_hi_u32 s13, s2, 171798692
    s_mul_i32 s14, s13, 25
    s_sub_u32 s14, s2, s14
    s_lshl_b32 s14, s14, 2
    s_add_u32 s14, s14, s12
    s_waitcnt lgkmcnt(0)""")
    p(f"""s_mul_i32 s15, s13, {16*PART_BYTES}
    s_add_u32 s8, s8, s15
    s_addc_u32 s9, s9, 0
    s_mov_b32 s10, {16*PART_BYTES}
    s_mov_b32 s11, 0x20000
    s_mov_b32 s6, {8*80*1152*2}
    s_mov_b32 s7, 0x20000
    s_lshr_b32 s16, s13, 3
    s_and_b32 s17, s13, 7
    s_mul_i32 s17, s17, {80*2304}
    s_mul_i32 s16, s16, 1152
    s_add_u32 s17, s17, s16
    s_mul_hi_u32 s18, s14, 858993460
    s_mul_i32 s19, s18, 5
    s_sub_u32 s19, s14, s19
    s_mul_i32 s19, s19, {16*2304}
    s_add_u32 s17, s17, s19
    v_and_b32 v1, 15, v0
    v_lshrrev_b32 v2, 4, v0
    v_mul_u32_u24 v1, 2304, v1
    v_lshl_add_u32 v1, v2, 3, v1
    s_mov_b32 s20, 0xffff0000
    s_cmp_ge_u32 s14, 80
    s_cbranch_scc1 L_rhalf""")
    def body(nreg, ld, lanesh):
        p(f"v_lshlrev_b32 v3, {lanesh}, v0")
        for k in range(16):
            p(f"s_add_u32 s22, s21, {k*PART_BYTES}")
            p(f"{ld} {vr(16+k*nreg, nreg)}, v3, s[8:11], s22 offen")
        for k in range(16):
            for r in range(nreg):
                src = 16 + k * nreg + r
                if k == 0:
                    p(f"v_lshlrev_b32 v{4+2*r}, 16, v{src}"); p(f"v_and_b32 v{5+2*r}, s20, v{src}")
                else:
                    p(f"v_lshlrev_b32 v12, 16, v{src}"); p(f"v_and_b32 v13, s20, v{src}")
                    p(f"v_add_f32 v{4+2*r}, v{4+2*r}, v12"); p(f"v_add_f32 v{5+2*r}, v{5+2*r}, v13")
        for r in range(nreg):
            p(f"v_cvt_pk_bf16_f32 v{12+r}, v{4+2*r}, v{5+2*r}")
    p("s_lshl_b32 s21, s14, 10")
    body(4, "buffer_load_dwordx4", 4)
    p("""s_lshl_b32 s18, s18, 6
    s_add_u32 s17, s17, s18
    buffer_store_dwordx2 v[12:13], v1, s[4:7], s17 offen
    buffer_store_dwordx2 v[14:15], v1, s[4:7], s17 offen offset:32
    s_endpgm""")
    p("L_rhalf:")
    p.forget()
    p("""s_sub_u32 s21, s14, 80
    s_lshl_b32 s21, s21, 9
    s_add_u32 s21, s21, 81920""")
    body(2, "buffer_load_dwordx2", 3)
    p("""s_sub_u32 s18, s18, 16
    s_lshl_b32 s18, s18, 5
    s_add_u32 s17, s17, s18
    buffer_store_dwordx2 v[12:13], v1, s[4:7], s17 offen offset:1024""")
    p("L_rend:"); p("s_endpgm")
    p.finalize()
    return p.text()

def kd(name, vgpr, accum, sgpr=102):
    return f""".amdhsa_kernel {name}
  .amdhsa_next_free_vgpr {vgpr}
  .amdhsa_next_free_sgpr {sgpr}
  .amdhsa_accum_offset {accum}
  .amdhsa_group_segment_fixed_size 0
  .amdhsa_kernarg_size 104
  .amdhsa_user_sgpr_count 2
  .amdhsa_user_sgpr_kernarg_segment_ptr 1
  .amdhsa_system_sgpr_workgroup_id_x 1
  .amdhsa_float_denorm_mode_32 3
.end_amdhsa_kernel
"""

def build(kvflag=" nt", stamps=False):
    g = Gen(kvflag, stamps)
    g.prologue(); g.qproj(); g.attention(); g.exchange(); g.oproj(); g.dump_stamps()
    g.p("L_end:"); g.p("s_endpgm")
    g.p.finalize()
    hdr = open("cdna_kernels/" + NAME + ".s.ref").read().split("; Override launch")[0]
    out = hdr
    out += f"; @launch kernel={NAME}_kernel grid=(256,1,1) block=(256,1,1) lds=163840\n"
    out += f"; @launch kernel=reduce_kernel grid=(400,1,1) block=(256,1,1) lds=0\n"
    out += '.amdgcn_target "amdgcn-amd-amdhsa--gfx950"\n.text\n'
    out += f".globl {NAME}_kernel\n.p2align 8\n.type {NAME}_kernel,@function\n{NAME}_kernel:\n" + g.p.text()
    out += ".globl reduce_kernel\n.p2align 8\n.type reduce_kernel,@function\nreduce_kernel:\n" + reduce_kernel()
    out += '.section .rodata,"a"\n.p2align 6\n' + kd(NAME + "_kernel", 512, 256) + ".p2align 6\n" + kd("reduce_kernel", 80, 80, 32)
    return out

if __name__ == "__main__":
    open("k_nt.s", "w").write(build(" nt"))
    open("k_def.s", "w").write(build(""))
    open("k_nt_st.s", "w").write(build(" nt", True))
```

```python
import re

REG_RE = re.compile(r'^(-|\|)?([vas])(?:(\d+)|\[(\d+):(\d+)\])\|?$')

def regs_of(tok):
    tok = tok.strip()
    if tok in ('vcc',): return ['vcc']
    if tok in ('exec',): return ['exec']
    if tok in ('m0',): return ['m0']
    m = REG_RE.match(tok)
    if not m: return []
    f = m.group(2)
    if m.group(3) is not None: return [f + m.group(3)]
    return [f + str(i) for i in range(int(m.group(4)), int(m.group(5)) + 1)]

def split_ops(s):
    ops, depth, cur = [], 0, ''
    for ch in s:
        if ch in '[(': depth += 1
        elif ch in '])': depth -= 1
        if ch == ',' and depth == 0:
            ops.append(cur.strip()); cur = ''
        else: cur += ch
    if cur.strip(): ops.append(cur.strip())
    return ops

TRANS = ('v_exp_f32', 'v_log_f32', 'v_rcp_f32', 'v_rsq_f32', 'v_sqrt_f32', 'v_sin_f32', 'v_cos_f32')

def base(mn): return re.sub(r'_e(32|64)$', '', mn)

class Ins:
    __slots__ = ('text', 'mn', 'kind', 'rd', 'wr', 'A', 'B', 'C', 'D', 'data', 'nop')
    def __init__(self, text):
        self.text = text
        t = text.strip()
        self.rd, self.wr = set(), set()
        self.A = self.B = self.C = self.D = frozenset(); self.data = frozenset(); self.nop = 0
        if t.endswith(':') or t.startswith('.') or t.startswith(';') or not t:
            self.mn = ''; self.kind = 'label'; return
        parts = t.split(None, 1)
        mn = parts[0]; self.mn = mn
        rest = parts[1] if len(parts) > 1 else ''
        ops = split_ops(rest)
        opsr = [o.split()[0] for o in ops]
        mods = ' '.join(' '.join(o.split()[1:]) for o in ops)
        R = lambda i: regs_of(opsr[i]) if i < len(opsr) else []
        if mn.startswith('v_mfma'):
            self.kind = 'mfma'
            self.D, self.A, self.B, self.C = map(lambda i: frozenset(R(i)), range(4))
            self.wr = set(self.D); self.rd = set(self.A) | set(self.B) | set(self.C)
        elif mn.startswith('ds_read') or mn.startswith('ds_bpermute'):
            self.kind = 'dsr'; self.wr = set(R(0)); self.rd = set(R(1)) | set(R(2))
        elif mn.startswith('ds_write'):
            self.kind = 'dsw'; self.rd = set(R(0)) | set(R(1)) | set(R(2)); self.data = frozenset(R(1) + R(2))
        elif mn.startswith('buffer_load') or mn.startswith('global_load'):
            if ' lds' in ' ' + mods or mn.startswith('global_load_lds'):
                self.kind = 'dma'
                for i in range(len(opsr)): self.rd |= set(R(i))
                self.rd.add('m0')
            else:
                self.kind = 'vld'; self.wr = set(R(0))
                for i in range(1, len(opsr)): self.rd |= set(R(i))
        elif mn.startswith('buffer_store'):
            self.kind = 'vst'; self.data = frozenset(R(0))
            for i in range(len(opsr)): self.rd |= set(R(i))
        elif mn.startswith('global_store'):
            self.kind = 'vst'; self.data = frozenset(R(1))
            for i in range(len(opsr)): self.rd |= set(R(i))
        elif mn.startswith('buffer_atomic'):
            self.kind = 'vat'; self.data = frozenset(R(0))
            for i in range(len(opsr)): self.rd |= set(R(i))
            if 'sc0' in mods: self.wr = set(R(0))
        elif mn.startswith('buffer_wbl2') or mn.startswith('buffer_inv'):
            self.kind = 'vmisc'
        elif mn == 's_nop':
            self.kind = 'nop'; self.nop = int(opsr[0], 0) + 1
        elif mn in ('s_waitcnt', 's_barrier', 's_endpgm', 's_setprio', 's_sleep') or mn.startswith('s_cbranch') or mn == 's_branch':
            self.kind = 'ctl'
        elif mn.startswith('s_load') or mn.startswith('s_mem') or mn.startswith('s_buffer_load'):
            self.kind = 'smem'; self.wr = set(R(0))
            for i in range(1, len(opsr)): self.rd |= set(R(i))
        elif mn.startswith('s_'):
            self.kind = 'salu'
            if mn.startswith('s_cmp') or mn.startswith('s_bitcmp'):
                for i in range(len(opsr)): self.rd |= set(R(i))
            else:
                self.wr = set(R(0))
                for i in range(1, len(opsr)): self.rd |= set(R(i))
                if 'saveexec' in mn: self.wr.add('exec')
        elif mn.startswith('v_'):
            self.kind = 'valu'
            self.wr = set(R(0))
            for i in range(1, len(opsr)): self.rd |= set(R(i))
            if mn.startswith('v_permlane') and 'swap' in mn:
                self.wr |= set(R(1)); self.rd |= set(R(0))
            if mn.startswith('v_fmac') or mn.startswith('v_pk_fmac') or mn.startswith('v_dot2c'):
                self.rd |= set(R(0))
            if mn.startswith('v_add_co') or mn.startswith('v_addc_co') or mn.startswith('v_sub_co'):
                self.wr |= set(R(1))
        else:
            raise ValueError('unknown instr: ' + text)

class Prog:
    def __init__(self):
        self.ins = []
        self.vm_seq = 0; self.vm_done = 0; self.vm_pend = {}
        self.lg_seq = 0; self.lg_done = 0; self.lg_pend = {}
    def _wait(self, vm=None, lg=None):
        parts = []
        if vm is not None and vm > self.vm_done:
            n = min(self.vm_seq - vm, 63); parts.append(f'vmcnt({n})'); self.vm_done = self.vm_seq - n
        if lg is not None and lg > self.lg_done:
            n = min(self.lg_seq - lg, 15); parts.append(f'lgkmcnt({n})'); self.lg_done = self.lg_seq - n
        if parts: self.ins.append(Ins('  s_waitcnt ' + ' '.join(parts)))
    def wait_vm(self, tok): self._wait(vm=tok)
    def wait_bar(self, tok=None):
        self._wait(vm=tok, lg=self.lg_seq); self("s_barrier")
    def wait_lg(self, tok): self._wait(lg=tok)
    def wait_all(self, vm=True, lg=True, force=False):
        if force:
            parts = []
            if vm: parts.append('vmcnt(0)'); self.vm_done = self.vm_seq
            if lg: parts.append('lgkmcnt(0)'); self.lg_done = self.lg_seq
            self.ins.append(Ins('  s_waitcnt ' + ' '.join(parts)))
        else:
            self._wait(self.vm_seq if vm else None, self.lg_seq if lg else None)
    def forget(self):
        self.vm_done = self.vm_seq; self.lg_done = self.lg_seq
    def __call__(self, text):
        for line in text.split('\n'):
            if line.strip(): self.emit1('  ' + line.strip() if not line.strip().endswith(':') else line.strip())
        return self.last
    def emit1(self, text):
        I = Ins(text)
        touched = I.rd | I.wr
        vm = max([self.vm_pend.get(r, 0) for r in touched] + [0])
        lg = max([self.lg_pend.get(r, 0) for r in touched] + [0])
        if I.kind == 'dsr':
            lg = max([self.lg_pend.get(r, 0) for r in I.rd] + [0])
        if I.kind == 'vld':
            vm = max([self.vm_pend.get(r, 0) for r in I.rd] + [0])
        self._wait(vm if vm else None, lg if lg else None)
        self.ins.append(I)
        self.last = None
        if I.kind in ('vld', 'dma', 'vst', 'vat', 'vmisc'):
            self.vm_seq += 1
            assert self.vm_seq - self.vm_done <= 63 or True
            for r in I.wr: self.vm_pend[r] = self.vm_seq
            self.last = self.vm_seq
        elif I.kind in ('dsr', 'dsw'):
            self.lg_seq += 1
            for r in I.wr: self.lg_pend[r] = self.lg_seq
            self.last = self.lg_seq
    def finalize(self):
        out = []
        def need(p, c):
            n = 0
            if p.kind == 'valu':
                vw = {r for r in p.wr if r[0] in 'va' and r != 'vcc'}
                sw = {r for r in p.wr if r[0] == 's' or r == 'vcc'}
                if c.kind == 'mfma' and vw & c.rd: n = max(n, 2)
                if c.kind == 'valu':
                    if base(p.mn) in TRANS and base(c.mn) not in TRANS and vw & (c.rd): n = max(n, 1)
                    if c.mn.startswith('v_permlane') and vw & c.rd: n = max(n, 2)
                    if (c.mn.startswith('v_readfirstlane') or c.mn.startswith('v_readlane')) and vw & c.rd: n = max(n, 1)
                    if 'dpp' in c.text and vw & c.rd: n = max(n, 2)
                    if sw & c.rd: n = max(n, 2)
                    if (c.mn.startswith('v_readlane') or c.mn.startswith('v_writelane')) and sw & c.rd: n = max(n, 4)
                if c.kind in ('vld', 'dma', 'vst', 'vat') and sw & c.rd: n = max(n, 5)
                if c.kind in ('salu', 'ctl') and sw & c.rd: n = max(n, 1)
                if base(p.mn) in TRANS and c.kind in ('dsw', 'vst', 'dsr', 'vld', 'dma') and vw & c.rd: n = max(n, 1)
            if p.kind == 'mfma':
                if c.kind == 'mfma':
                    if p.D & (c.A | c.B): n = max(n, 8)
                    if p.D & c.C and p.D != c.C: n = max(n, 6)
                    if p.D & c.D and p.D != c.D: n = max(n, 6)
                elif c.kind in ('valu', 'dsr', 'dsw', 'vld', 'vst', 'dma', 'vat'):
                    if p.D & (c.rd | c.wr): n = max(n, 8)
                    if c.kind == 'valu' and p.C & c.wr: n = max(n, 3)
            if p.kind == 'salu' and 'm0' in p.wr and c.kind == 'dma': n = max(n, 1)
            if p.kind in ('vst', 'vat') and len(p.data) >= 3 and p.data & c.wr:
                n = max(n, 2 if c.kind == 'valu' else 1)
            return n
        for c in self.ins:
            if c.kind not in ('label', 'nop'):
                dist = 0; req = 0
                for p in reversed(out):
                    if p.kind == 'label': continue
                    if dist >= 8: break
                    req = max(req, need(p, c) - dist)
                    dist += p.nop if p.kind == 'nop' else 1
                if req > 0: out.append(Ins(f'  s_nop {req - 1}'))
            out.append(c)
        self.ins = out
    def text(self):
        return '\n'.join(i.text for i in self.ins) + '\n'

def interleave(mf, fillers, start=0, end=None):
    end = len(mf) if end is None else end
    n = end - start
    slots = [[] for _ in mf]
    k = len(fillers)
    for i, f in enumerate(fillers):
        pos = start + min(n - 1, (i * n) // max(k, 1))
        slots[pos].append(f)
    return slots

def ityp(it):
    if callable(it): return it.t
    mn = it.split()[0]
    if base(mn) in TRANS: return 'E'
    if mn.startswith('v_pk_'): return 'P'
    if mn.startswith('v_'): return 'c'
    if mn.startswith('ds_read'): return 'L'
    if mn == 'ds_write_b128': return 'W'
    if mn.startswith('ds_write'): return 'w'
    if mn.startswith('buffer_') or mn.startswith('global_'): return 'D'
    return 'S'
def typed(t, f):
    f.t = t; return f
def gapcost(ts):
    t = 4; prev = 'M'
    for x in ts:
        if x in 'Ec':
            if prev in 'LD': t += 4
            t = max(t, 8) + (8 if x == 'E' else 4)
        elif x == 'P': t = max(t, 16) + 16
        elif x == 'S': t += 4
        elif x == 'Z': continue
        elif x in 'LD':
            if prev in 'Ec': t += 4
            t += 4
        elif x == 'W': t += 24
        elif x == 'w': t += 16
        else:
            t += 4 * int(x)
        prev = x
    if prev in 'LD': t += 4
    return t
def schedule(nm, streams, late=3):
    slots = [[] for _ in range(nm)]
    st = []
    for items, lo, hi in streams:
        items = list(items)
        if not items: continue
        hi = min(hi, nm); lo = min(lo, hi - 1)
        k = len(items)
        tys = [ityp(x) for x in items]
        hasD = any(t in 'DW' for t in tys) and any(t == 'S' for t in tys)
        wts = [(0.0 if t == 'Z' else 0.15 if (hasD and t == 'S') else 1.0) for t in tys]
        tot = sum(wts) or 1.0; acc = 0.0; tg = []
        for w_ in wts: tg.append(lo + acc * (hi - lo) / tot); acc += w_
        st.append(dict(items=items, tgt=tg, lo=lo, hi=hi, i=0))
    order = lambda lst: sorted(lst, key=lambda e: (1 if e[1] in 'EcP' else 0))
    for g in range(nm):
        cur = []
        while True:
            cands = []
            for si, s in enumerate(st):
                if s['i'] < len(s['items']) and g >= s['lo'] and s['tgt'][s['i']] <= g + 2.0:
                    cands.append((s['tgt'][s['i']], si))
            cands.sort()
            placed = False
            for tg, si in cands:
                s = st[si]; it = s['items'][s['i']]; ty = ityp(it)
                if ty not in 'EcP' and any(e[2] == si and e[1] in 'EcP' for e in cur):
                    if g < nm - 1: continue
                trial = order(cur + [(it, ty, si)]) if g < nm - 1 else cur + [(it, ty, si)]
                c = gapcost([e[1] for e in trial])
                remaining = len(s['items']) - s['i']
                must = (g - tg >= late) or (g >= nm - 1) or (s['hi'] + late - g <= 0)
                if c <= 16 or (not cur and c > 16 and tg <= g) or must:
                    cur = trial; s['i'] += 1; placed = True; break
            if not placed: break
        slots[g] = [e[0] for e in cur]
    for s in st: assert s['i'] == len(s['items']), "unplaced items"
    return slots

def est(slots):
    return sum(max(16, gapcost([ityp(x) for x in sl])) for sl in slots)

import subprocess
def sizes_of(text):
    open('_sz.s', 'w').write('.amdgcn_target "amdgcn-amd-amdhsa--gfx950"\n.text\n' + text)
    r = subprocess.run(['clang', '-x', 'assembler', '-target', 'amdgcn-amd-amdhsa', '-mcpu=gfx950', '-c', '_sz.s', '-o', '_sz.o'], capture_output=True, text=True)
    assert r.returncode == 0, r.stderr[:2000]
    d = subprocess.run(['llvm-objdump', '-d', '--mcpu=gfx950', '_sz.o'], capture_output=True, text=True).stdout
    out = []
    for l in d.split('\n'):
        m = re.search(r'//\s+[0-9A-F]{12}:((?:\s[0-9A-F]{8})+)', l)
        if m: out.append(4 * len(m.group(1).split()))
    return out
NOE64 = ('v_readfirstlane', 'v_permlane', 'v_accvgpr', 'v_fmac', 'v_add_co', 'v_addc_co', 'v_cmp', 'v_nop')
def align(prog):
    ins = [i for i in prog.ins]
    real = [i for i in ins if i.kind != 'label']
    sz = sizes_of(prog.text()); assert len(sz) == len(real), (len(sz), len(real))
    size = {id(i): s for i, s in zip(real, sz)}
    out = []; off = 0; nn = 0; nw = 0
    for i in ins:
        if i.kind == 'label': out.append(i); continue
        if i.kind == 'mfma' and off % 8:
            fixed = False
            for k in range(len(out) - 1, -1, -1):
                q = out[k]
                if q.kind in ('mfma', 'label'): break
                if q.kind == 'valu' and size[id(q)] == 4 and not q.mn.startswith(NOE64) and not q.mn.endswith('_e64'):
                    n = Ins(q.text.replace(q.mn, base(q.mn) + '_e64', 1)); size[id(n)] = 8; out[k] = n; fixed = True; nw += 1; break
            if not fixed:
                k = len(out)
                while k > 0 and out[k - 1].kind not in ('mfma', 'label') : k -= 1
                n = Ins('  s_nop 0'); size[id(n)] = 4
                out.insert(k if (k > 0 and out[k-1].kind == 'mfma' and len(out) - k <= 4) else len(out), n); nn += 1
            off += 4
        out.append(i); off += size[id(i)]
    prog.ins = out
    return off, nw, nn
```

```python
import sys, struct, math
from asmlib import *
NAME = "concat_heads__gqa_block_cached__gqa_block_cached__near_ridge"

def vr(b, n=4): return f"v[{b}:{b+n-1}]"
def ar(b, n=4): return f"a[{b}:{b+n-1}]"
def f2u(x): return struct.unpack('<I', struct.pack('<f', x))[0]
K1 = 1024
def KSLOT(s): return (s % 4) * 16384
VWIN = 64 * K1
def VSLOT(s): return VWIN + (s % 3) * 16384
PX = 112 * K1
MISC = 152 * K1
QX = PX
OG = 80 * K1
WBUF = [64 * K1, 32 * K1, 96 * K1]; XRING = 128 * K1
UBUF = [0, 32 * K1, 128 * K1]
PART_BYTES = 92160
STAMP_OFF = 200 << 20
FLAG_OFF = 64 << 20
KRD = 4; VRD = 8; KDMA = 16; VDMA = 20; LIN = 22; WD = 24; DUMMY = 27
NEGM = 28; SREG = 48; PREG = 88; OREG = 128
PW = 208; PR = 209; OGW = 210; OGR = 211; WRD = 212; W4RD = 216; STA = 217; STB = 218; RDY = 219; TMP = 220
def S(j, kt): return SREG + (j * 2 + kt) * 4
def PO_(st, j): return PREG + (st * 5 + j) * 4
def O(tt, j): return OREG + (tt * 5 + j) * 4
def QB(ds, j): return (ds * 5 + j) * 4
def KA(st, kt, ds): return 80 + st * 32 + (kt * 4 + ds) * 4
def VA(k, tt): return 144 + (k * 4 + tt) * 4
def POT(j): return 176 + j * 4
LACC = 196; ONES = 216
XRD = 48; XD = 50; WQD = 52; TID = 54; WQRD = 56
def QACC(tt, qt): return OREG + (tt * 5 + qt) * 4
def XF(st, e, qt): return st * 72 + (e * 5 + qt) * 4
def WF(st, e, tt): return st * 72 + 40 + (e * 4 + tt) * 4
def OB(sg, j): return (144 if sg < 4 else 0) + ((sg & 3) * 5 + j) * 4
def WA(st): return 80 + st * 32
MF = "v_mfma_f32_16x16x32_bf16"
ST0 = 72

class Gen:
    def __init__(self, **o):
        self.o = dict(kv=" nt", stamps=False, codetouch=True, wotouch=True, code_bytes=48384, ct0=16384,
                      stflag=" sc1", ldflag=" sc1", dK=4, dV=2, u0=13, u1=14, wotouch_it=12, thr=2.0 ** 40,
                      front={0: ['K0', 'K1'], 6: ['V0'], 7: ['K2'], 8: ['V1'], 9: ['K3']})
        self.o.update(o)
        self.p = Prog(); self.nst = 0; self.stn = []
        self.tokK = {}; self.tokV = {}; self.tokU = {}
    def stamp(self, name=""):
        if not self.o['stamps']: return
        if self.o.get('stampset') and name not in self.o['stampset']: return
        p = self.p
        assert self.nst < 15
        p.wait_all(vm=False, lg=True)
        p(f"{'s_memtime' if self.o.get('cyc') else 's_memrealtime'} s[{ST0+2*self.nst}:{ST0+1+2*self.nst}]")
        p("s_waitcnt lgkmcnt(0)")
        self.nst += 1; self.stn.append(name)
    def run(self, items):
        for it in items:
            if callable(it): it()
            elif isinstance(it, (list, tuple)): self.run(it)
            else: self.p(it)
    def flat(self, items):
        out = []
        for it in items:
            if isinstance(it, (list, tuple)): out += self.flat(it)
            else: out.append(it)
        return out
    def mix(self, mf, *fillsets, tag=None):
        slots = schedule(len(mf), [(self.flat(fl), st, en) for fl, st, en in fillsets])
        if tag and self.o.get('verbose'): print(tag, "est cycles", est(slots), "mfma", len(mf) * 16)
        for m, sl in zip(mf, slots):
            self.p(m); self.run(sl)
    m0key = None; s51val = None
    def setm0(self, imm, sreg="s43"):
        key = (sreg, imm)
        if self.m0key != key:
            self.m0key = key; return [f"s_add_u32 m0, {sreg}, {imm if imm > 64 else '0x%x' % imm}"]
        return []
    def sets51(self, v):
        if self.s51val != v:
            self.s51val = v; return [f"s_mov_b32 s51, {v}"]
        return []
    def setkv(self, s):
        if self.s51val != ('kv', s):
            self.s51val = ('kv', s)
            return [f"s_add_u32 s51, s49, {s*16384}", "s_and_b32 s51, s51, 0x3ffff"]
        return []
    def dmaK(self, s):
        out = []
        for n in range(4):
            out += self.setm0(KSLOT(s)) + self.setkv(s)
            def f(n=n):
                self.tokK[s] = self.p(f"buffer_load_dwordx4 v{KDMA+n}, s[8:11], s51 offen offset:{n*1024}{self.o['kv']} lds")
            out.append(typed('D', f))
        return out
    def dmaV(self, s):
        out = []
        for n in range(4):
            out += self.setm0(VSLOT(s)) + self.setkv(s)
            def f(n=n):
                self.tokV[s] = self.p(f"buffer_load_dwordx4 v{VDMA+(n&1)}, s[12:15], s51 offen offset:{n*1024}{self.o['kv']} lds")
            out.append(typed('D', f))
        return out
    def dmaT(self, t):
        return self.dmaK(int(t[1:])) if t[0] == 'K' else self.dmaV(int(t[1:]))
    def dmaU(self, u):
        out = []
        buf = UBUF[u % 3]
        for n in range(8):
            out += self.setm0(buf + (n & 4) * 1024, "s53")
            if u < 8:
                g, k = u >> 1, u & 1
                so = k * 128 * 1152 + g * 256 + n * 4608 - 1024 * (n & 3); v = WD + (n & 1)
            else:
                so = 1024 + n * 9216 - 1024 * (n & 3); v = WD + 2
            out += self.sets51(so)
            def f(n=n, v=v):
                self.tokU[u] = self.p(f"buffer_load_dwordx4 v{v}, s[20:23], s51 offen offset:{(n&3)*1024} lds")
            out.append(typed('D', f))
        return out
    def rdK(self, s):
        st = s & 1
        return [f"ds_read_b128 {ar(KA(st,kt,ds))}, v{KRD+ds} offset:{KSLOT(s)+kt*4096}" for ds in range(4) for kt in range(2)]
    def rdV(self, s):
        return [f"ds_read_b64_tr_b16 {ar(VA(k,tt)+2*hh,2)}, v{VRD+4*k+tt} offset:{VSLOT(s)-VWIN+hh*4096}" for k in range(2) for tt in range(4) for hh in range(2)]
    def rdP(self, s):
        return [f"ds_read_b128 {ar(POT(j))}, v{PR} offset:{(s&1)*20480+j*1024}" for j in range(5)]
    def qk(self, s, j, cinit):
        st = s & 1; out = []
        for ds in range(4):
            for kt in range(2):
                c = cinit if ds == 0 else vr(S(j, kt))
                out.append(f"{MF} {vr(S(j,kt))}, {ar(KA(st,kt,ds))}, {ar(QB(ds,j))}, {c}")
        return out
    def pv(self, s, j):
        Pn = vr(PO_(s & 1, j)); Pt = ar(POT(j)); L = ar(LACC + 4 * j); out = []
        out.append(f"{MF} {L}, {ar(ONES)}, {Pn}, {'0' if s == 0 else L}")
        for tt in range(4):
            out.append(f"{MF} {vr(O(tt,j))}, {ar(VA(0,tt))}, {Pn}, {'0' if s == 0 else vr(O(tt,j))}")
        out.append(f"{MF} {L}, {ar(ONES)}, {Pt}, {L}")
        for tt in range(4):
            out.append(f"{MF} {vr(O(tt,j))}, {ar(VA(1,tt))}, {Pt}, {vr(O(tt,j))}")
        return out
    def expo(self, s, j):
        P = PO_(s & 1, j)
        b0, b1 = S(j, 0), S(j, 1)
        return [f"v_exp_f32_e64 v{b0}, v{b0}", f"v_exp_f32_e64 v{b0+1}, v{b0+1}", f"v_exp_f32_e64 v{b0+2}, v{b0+2}",
               f"v_cvt_pk_bf16_f32 v{P}, v{b0}, v{b0+1}", f"v_exp_f32_e64 v{b0+3}, v{b0+3}",
               f"v_exp_f32_e64 v{b1}, v{b1}", f"v_cvt_pk_bf16_f32 v{P+1}, v{b0+2}, v{b0+3}",
               f"v_exp_f32_e64 v{b1+1}, v{b1+1}", f"v_exp_f32_e64 v{b1+2}, v{b1+2}",
               f"v_cvt_pk_bf16_f32 v{P+2}, v{b1}, v{b1+1}", f"v_exp_f32_e64 v{b1+3}, v{b1+3}",
               f"v_cvt_pk_bf16_f32 v{P+3}, v{b1+2}, v{b1+3}",
               f"ds_write_b128 v{PW}, {vr(P)} offset:{(s&1)*20480+j*1024}"]
    def codetouch(self, lo, hi, tid):
        p = self.p
        n = (hi - lo + 16383) // 16384
        for i in range(n):
            p(f"v_lshlrev_b32 v{TMP}, 6, v{tid}")
            p(f"v_add_u32 v{TMP}, {lo + i*16384}, v{TMP}")
            p(f"v_min_u32 v{TMP}, {hi - 8}, v{TMP}")
            p(f"v_mov_b32 v{TMP+1}, s69")
            p(f"v_add_co_u32 v{TMP}, vcc, s68, v{TMP}")
            p(f"v_addc_co_u32 v{TMP+1}, vcc, 0, v{TMP+1}, vcc")
            p(f"global_load_dword v{DUMMY}, {vr(TMP,2)}, off")

    def prologue(self):
        p = self.p; o = self.o
        p("s_getpc_b64 s[68:69]")
        p("s_cmp_ge_u32 s2, 256"); p("s_cbranch_scc1 L_end")
        if o['stamps']:
            p(f"{'s_memtime' if o.get('cyc') else 's_memrealtime'} s[{ST0}:{ST0+1}]"); self.nst = 1; self.stn.append("start")
        p("""s_lshr_b32 s35, s2, 2
        s_and_b32 s35, s35, 1
        s_mul_i32 s38, s35, 40
        s_add_u32 s38, s0, s38
        s_addc_u32 s39, s1, 0
        s_load_dwordx8 s[44:51], s[38:39], 0
        s_load_dwordx2 s[52:53], s[38:39], 32
        s_load_dwordx4 s[56:59], s[0:1], 80
        s_load_dwordx2 s[54:55], s[0:1], 96""")
        p(f"v_mov_b32 v{TID}, v0")
        p("""s_and_b32 s38, s2, 3
        s_lshr_b32 s39, s2, 3
        s_and_b32 s36, s39, 7
        s_lshr_b32 s39, s39, 3
        s_lshl_b32 s38, s38, 2
        s_add_u32 s37, s38, s39
        v_lshrrev_b32 v1, 6, v0
        v_and_b32 v0, 63, v0
        v_readfirstlane_b32 s32, v1
        v_and_b32 v1, 15, v0
        v_lshrrev_b32 v2, 4, v0
        s_and_b32 s33, s32, 1
        s_lshr_b32 s34, s32, 1""")
        p(f"""s_lshl_b32 s39, s39, 1
        s_add_u32 s66, s36, s39
        s_sub_u32 s39, s66, 9
        s_cmp_ge_u32 s66, 9
        s_cselect_b32 s66, s39, s66""")
        p(f"""s_lshl_b32 s38, s33, 2
        v_add_u32 v3, s38, v2
        v_and_b32 v23, 7, v0
        v_xor_b32 v3, v3, v23
        v_lshlrev_b32 v3, 4, v3
        v_lshrrev_b32 v23, 3, v0
        v_mul_u32_u24 v23, 1152, v23
        v_add_u32 v{XD}, v3, v23""")
        p(f"""s_lshl_b32 s38, s32, 17
        v_lshlrev_b32 v3, 13, v2
        v_add_u32 v3, s38, v3
        v_lshlrev_b32 v23, 1, v2
        v_xor_b32 v23, v1, v23
        v_lshl_add_u32 v{WQD}, v23, 4, v3
        v_xor_b32 v23, 8, v23
        v_lshl_add_u32 v{WQD+1}, v23, 4, v3""")
        p(f"""s_lshl_b32 s60, s32, 10
        s_lshl_b32 s61, s33, 10
        s_mul_i32 s63, s32, 9216
        s_mul_i32 s65, s33, 9216
        s_lshl_b32 s43, s32, 12
        s_mul_i32 s42, s36, 92160
        s_mov_b32 s6, 92160
        s_mov_b32 s7, 0x20000
        s_lshl_b32 s38, s37, 9
        s_sub_u32 s18, {576*8192}, s38
        s_mov_b32 s19, 0x20000""")
        p("s_waitcnt lgkmcnt(0)")
        p(f"""s_add_u32 s4, s44, s42
        s_addc_u32 s5, s45, 0
        s_add_u32 s16, s50, s38
        s_addc_u32 s17, s51, 0""")
        self.stamp("karg")
    def srd_rest(self):
        self.p(f"""s_lshl_b32 s38, s36, 4
        s_add_u32 s38, s38, s37
        s_lshl_b32 s38, s38, 18
        s_add_u32 s8, s46, s38
        s_addc_u32 s9, s47, 0
        s_mov_b32 s10, 262144
        s_mov_b32 s11, 0x20000
        s_add_u32 s12, s48, s38
        s_addc_u32 s13, s49, 0
        s_mov_b32 s14, 262144
        s_mov_b32 s15, 0x20000
        s_mul_i32 s38, s37, {256*1152}
        s_add_u32 s20, s52, s38
        s_addc_u32 s21, s53, 0
        s_mov_b32 s22, {256*1152}
        s_mov_b32 s23, 0x20000
        s_lshl_b32 s53, s32, 13
        s_lshl_b32 s52, s35, 3
        s_add_u32 s52, s52, s36
        s_mul_i32 s38, s52, {16*PART_BYTES}
        s_add_u32 s28, s54, s38
        s_addc_u32 s29, s55, 0
        s_mov_b32 s30, {16*PART_BYTES}
        s_mov_b32 s31, 0x20000
        s_mul_i32 s38, s37, {PART_BYTES}
        s_add_u32 s24, s28, s38
        s_addc_u32 s25, s29, 0
        s_mov_b32 s26, {PART_BYTES}
        s_mov_b32 s27, 0x20000
        s_mov_b32 s44, s56
        s_mov_b32 s45, s57
        s_mov_b32 s46, {8*80*1152*2}
        s_mov_b32 s47, 0x20000
        s_mov_b32 s56, s58
        s_mov_b32 s57, s59
        s_mov_b32 s58, 256
        s_mov_b32 s59, 0x20000
        s_mov_b32 s50, 0
        s_lshr_b32 s38, s2, 3
        s_and_b32 s39, s2, 7
        s_lshl_b32 s39, s39, 1
        s_add_u32 s38, s38, s39
        s_and_b32 s38, s38, {15 if self.o.get('kvrot', True) else 0}
        s_lshl_b32 s49, s38, 14""")
    def srd_flag(self):
        self.p(f"""s_lshl_b32 s38, s52, 9
        s_add_u32 s38, s38, {FLAG_OFF}
        s_add_u32 s64, s54, s38
        s_addc_u32 s65, s55, 0
        s_mov_b32 s66, 512
        s_mov_b32 s67, 0x20000""")
    def dmaQ(self, c):
        p = self.p; out = []
        WB = WBUF[c % 3]; XBc = XRING + (c % 3) * 10240
        def ld(txt):
            def f(): self.tokQ[c] = p(txt)
            return typed('D', f)
        def rotstep():
            p("s_add_u32 s66, s66, 1"); p("s_cmp_eq_u32 s66, 9"); p("s_cselect_b32 s66, 0, s66")
        out += ["s_lshl_b32 s62, s66, 19", "s_lshl_b32 s64, s66, 7", "s_add_u32 s40, s63, s64", "s_add_u32 s41, s65, s64"]
        out += self.setm0(XBc, "s60") + [ld(f"buffer_load_dwordx4 v{XD}, s[4:7], s40 offen lds")]
        out += [typed('3', rotstep)]
        out += self.setm0(XBc + 4096, "s60") + [f"s_add_u32 s3, s40, {4*9216}", ld(f"buffer_load_dwordx4 v{XD}, s[4:7], s3 offen lds")]
        out += self.setm0(XBc + 8192, "s61") + [f"s_add_u32 s3, s41, {8*9216}", ld(f"buffer_load_dwordx4 v{XD}, s[4:7], s3 offen lds")]
        for h in range(2):
            for n in range(4):
                out += self.setm0(WB + h * 16384)
                out += [f"s_add_u32 s3, s62, {n*(32768-1024) + h*256}",
                        ld(f"buffer_load_dwordx4 v{WQD+(n>>1)}, s[16:19], s3 offen offset:{n*1024} lds")]
        return out
    def rdQ(self, c):
        st = c & 1; out = []
        for e in range(2):
            out += [f"ds_read_b128 {ar(XF(st,e,qt))}, v{XRD+e} offset:{(c%3)*10240+qt*2048}" for qt in range(5)]
            for tt in range(4):
                for hh in range(2):
                    out.append(f"ds_read_b64_tr_b16 {ar(WF(st,e,tt)+2*hh,2)}, v{WQRD+4*(c%3)+tt} offset:{e*8192+hh*1024}")
        return out
    def addr_dma(self):
        p = self.p
        p(f"""v_lshlrev_b32 v3, 8, v2
        v_add_u32 v3, s43, v3
        v_xor_b32 v23, v1, v2""")
        for n in range(4):
            p(f"v_xor_b32 v24, {4*n}, v23"); p(f"v_lshl_add_u32 v{KDMA+n}, v24, 4, v3")
        p(f"v_lshlrev_b32 v23, 1, v2"); p(f"v_xor_b32 v23, v1, v23")
        for n in range(2):
            p(f"v_xor_b32 v24, {8*n}, v23"); p(f"v_lshl_add_u32 v{VDMA+n}, v24, 4, v3")
    def addr_q(self):
        p = self.p
        p(f"v_lshlrev_b32 v{LIN}, 4, v0")
        p(f"""v_lshrrev_b32 v3, 1, v1
        v_xor_b32 v3, v3, v2
        v_lshlrev_b32 v23, 7, v1
        v_add_u32 v23, {XRING}, v23
        v_lshl_add_u32 v{XRD}, v3, 4, v23
        v_xor_b32 v3, 4, v3
        v_lshl_add_u32 v{XRD+1}, v3, 4, v23""")
        p(f"""v_bfe_u32 v3, v0, 2, 2
        v_lshl_add_u32 v23, v2, 3, v3
        v_lshlrev_b32 v23, 8, v23
        v_and_b32 v24, 3, v0
        v_lshl_add_u32 v23, v24, 3, v23
        s_lshl_b32 s38, s33, 14
        v_add_u32 v23, s38, v23
        v_bfe_u32 v3, v0, 2, 3
        s_lshl_b32 s39, s34, 2
        v_xor_b32 v3, s39, v3""")
        for tt in range(4):
            p(f"v_xor_b32 v24, {tt}, v3"); p(f"v_lshl_add_u32 v24, v24, 5, v23")
            for k in range(3): p(f"v_add_u32 v{WQRD+4*k+tt}, {WBUF[k]}, v24")
    def addr_rest(self):
        L = []
        a = lambda t: L.extend(x.strip() for x in t.split("\n") if x.strip())
        a(f"""s_lshl_b32 s38, s34, 13
        v_lshlrev_b32 v23, 8, v1
        v_add_u32 v23, s38, v23
        v_lshlrev_b32 v3, 1, v2
        v_xor_b32 v3, v3, v1""")
        for ds in range(4):
            a(f"v_xor_b32 v24, {8*(ds>>1)+(ds&1)}, v3"); a(f"v_lshl_add_u32 v{KRD+ds}, v24, 4, v23")
        a(f"""v_lshrrev_b32 v3, 2, v0
        v_lshlrev_b32 v23, 8, v3
        v_and_b32 v24, 3, v0
        v_lshl_add_u32 v{TMP+2}, v24, 3, v23
        v_add_u32 v23, s38, v{TMP+2}
        v_add_u32 v23, {VWIN}, v23
        v_and_b32 v{TMP+3}, 7, v3
        s_lshl_b32 s39, s34, 2
        v_xor_b32 v3, s39, v{TMP+3}""")
        for tt in range(4):
            a(f"v_xor_b32 v24, {tt}, v3"); a(f"v_lshl_add_u32 v{VRD+tt}, v24, 5, v23"); a(f"v_xor_b32 v{VRD+4+tt}, 8192, v{VRD+tt}")
        a(f"""s_lshl_b32 s39, s32, 1
        v_xor_b32 v3, s39, v{TMP+3}
        v_lshl_add_u32 v{WRD}, v3, 5, v{TMP+2}
        v_xor_b32 v3, 1, v3
        v_lshl_add_u32 v{WRD+1}, v3, 5, v{TMP+2}
        v_add_u32 v{WRD+2}, {128*K1}, v{WRD}
        v_add_u32 v{WRD+3}, {128*K1}, v{WRD+1}
        v_lshrrev_b32 v3, 2, v0
        v_lshlrev_b32 v23, 7, v3
        v_and_b32 v24, 3, v0
        v_lshl_add_u32 v23, v24, 3, v23
        v_bfe_u32 v3, v0, 3, 2
        v_xor_b32 v3, s32, v3
        v_lshl_add_u32 v{W4RD}, v3, 5, v23
        v_add_u32 v{W4RD}, {128*K1}, v{W4RD}
        s_mul_i32 s39, s32, 5120
        v_add_u32 v{STA}, s39, v{LIN}
        v_add_u32 v{PW}, {PX}, v{STA}
        s_xor_b32 s38, s32, 2
        s_mul_i32 s38, s38, 5120
        s_add_u32 s38, s38, {PX}
        v_add_u32 v{PR}, s38, v{LIN}
        s_mul_i32 s39, s32, 2560
        v_lshlrev_b32 v{STB}, 3, v0
        v_add_u32 v{STB}, s39, v{STB}
        v_add_u32 v{OGR}, {OG}, v{LIN}
        s_mul_i32 s39, s32, 10240
        v_add_u32 v{OGW}, s39, v{OGR}
        v_mov_b32 v3, 0x3f803f80""")
        for i in range(4): a(f"v_accvgpr_write_b32 a{ONES+i}, v3")
        a(f"""s_lshl_b32 s38, s32, 5
        v_add_u32 v3, s38, v2
        v_mul_u32_u24 v3, 1152, v3
        v_lshlrev_b32 v23, 1, v2
        v_xor_b32 v23, v1, v23
        v_lshl_add_u32 v{WD}, v23, 4, v3
        v_xor_b32 v23, 8, v23
        v_lshl_add_u32 v{WD+1}, v23, 4, v3
        s_lshl_b32 s38, s32, 6
        v_lshrrev_b32 v3, 3, v0
        v_add_u32 v3, s38, v3
        v_mul_u32_u24 v3, 1152, v3
        v_bfe_u32 v23, v0, 1, 2
        v_xor_b32 v23, v23, v2
        v_lshl_add_u32 v3, v23, 5, v3
        v_and_b32 v23, 1, v0
        v_lshl_add_u32 v{WD+2}, v23, 4, v3""")
        return L
    def wotouch(self):
        def f():
            p = self.p
            p(f"v_lshlrev_b32 v3, 7, v0")
            p(f"s_lshl_b32 s38, s36, 2")
            p(f"s_add_u32 s38, s38, s32")
            p(f"s_mul_i32 s38, s38, {72*128}")
            p(f"buffer_load_dword v{DUMMY}, v3, s[20:23], s38 offen")
            p(f"v_and_b32 v3, {7*128}, v3")
            p(f"s_add_u32 s38, s38, {8192}")
            p(f"buffer_load_dword v{DUMMY}, v3, s[20:23], s38 offen")
        return [typed('8', f)]

    def qproj(self):
        p = self.p; o = self.o
        self.tokQ = {}
        if o['codetouch']: self.codetouch(0, o['ct0'], TID)
        self.run(self.dmaQ(0))
        self.addr_q()
        self.srd_rest()
        self.addr_dma()
        self.run(self.dmaQ(1))
        self.stamp("q01i")
        p.wait_vm(self.tokQ[0])
        p("s_barrier")
        self.stamp("q0")
        self.run(self.rdQ(0))
        self.run(self.dmaQ(2))
        self.run(self.addr_rest())
        for c in range(9):
            st = c & 1
            p.wait_bar(self.tokQ[c + 1] if c + 1 <= 8 else None)
            self.stamp(f"c{c}")
            mf = [f"{MF} {vr(QACC(tt,qt))}, {ar(WF(st,e,tt))}, {ar(XF(st,e,qt))}, {'0' if (c == 0 and e == 0) else vr(QACC(tt,qt))}"
                  for e in range(2) for qt in range(5) for tt in range(4)]
            fs = []
            if c + 1 <= 8: fs.append((self.rdQ(c + 1), 0, 32))
            dm = []
            if c + 3 <= 8: dm = self.dmaQ(c + 3)
            for t in o['front'].get(c, ()): dm = dm + self.dmaT(t)
            if c == 5 and o['codetouch']: dm = dm + [typed('9', lambda: self.codetouch(o['ct0'], o['code_bytes'], TID))]
            fs.append((dm, 0, 36))
            if c == 8:
                cc = math.log2(math.e) / math.sqrt(128.0)
                pre = f"""s_mov_b32 s40, {f2u(cc)}
                s_mov_b32 s41, {f2u(cc)}
                s_mul_i32 s42, s33, 20480
                s_mul_i32 s3, s34, 10240
                s_add_u32 s3, s42, s3
                s_add_u32 s3, s3, {QX}
                v_lshlrev_b32 v3, 4, v1
                v_add_u32 v3, s3, v3
                v_bfe_u32 v23, v0, 4, 1
                v_lshl_add_u32 v3, v23, 3, v3
                v_lshrrev_b32 v23, 5, v0
                v_mul_u32_u24 v23, 5120, v23
                v_add_u32 v3, v3, v23
                s_add_u32 s42, s42, {QX}
                v_add_u32 v23, s42, v{LIN}""".split("\n")
                fs.append(([x.strip() for x in pre], 0, 20))
                fs.append((self.qfin(0), 26, 40))
            self.mix(mf, *fs, tag=f"c{c}")
        self.stamp("qdone")
        for qt in range(1, 5): self.run(self.qfin(qt, True))
        self.srd_flag()
        for t in o['front'].get(9, ()): self.run(self.dmaT(t))
    def qfin(self, qt, pk=False):
        out = []
        for tt in range(4):
            b = QACC(tt, qt); t = TMP + 4 + ((qt * 4 + tt) % 8) * 2
            if pk: out += [f"v_pk_mul_f32 {vr(b,2)}, {vr(b,2)}, s[40:41]", f"v_pk_mul_f32 {vr(b+2,2)}, {vr(b+2,2)}, s[40:41]"]
            else: out += [f"v_mul_f32_e64 v{b+i}, s40, v{b+i}" for i in range(4)]
            out += [f"v_cvt_pk_bf16_f32 v{t}, v{b}, v{b+1}", f"v_cvt_pk_bf16_f32 v{t+1}, v{b+2}, v{b+3}",
                    f"ds_write_b64 v3, {vr(t,2)} offset:{qt*1024+tt*256}"]
        return out

    def masked(self, nl, body, sel="s32"):
        p = self.p
        p(f"s_cmp_eq_u32 {sel}, 0")
        p(f"s_cselect_b32 s70, {'-1' if nl == 32 else (1 << nl) - 1}, 0")
        p(f"s_mov_b32 s71, 0")
        p(f"s_mov_b64 exec, s[70:71]")
        r = body()
        p("s_mov_b64 exec, -1")
        return r
    def flagzero(self):
        def f():
            p = self.p
            p(f"v_and_b32 v3, 15, v0"); p(f"v_lshlrev_b32 v3, 2, v3"); p(f"v_bfe_u32 v23, v0, 4, 1"); p(f"v_lshl_add_u32 v3, v23, 7, v3")
            p(f"v_mov_b32 v23, 0"); p("s_or_b32 s38, s37, s32")
            self.tokZ = self.masked(32, lambda: p(f"buffer_store_dword v23, v3, s[64:67], 0 offen sc1"), "s38")
        return [typed('9', f)]
    def readyset(self):
        def f():
            p = self.p
            p.wait_vm(self.tokZ)
            p(f"v_mov_b32 v3, 0"); p(f"v_mov_b32 v23, 1"); p("s_lshl_b32 s39, s52, 2"); p("s_or_b32 s38, s37, s32")
            self.masked(1, lambda: p(f"buffer_store_dword v23, v3, s[56:59], s39 offen sc1"), "s38")
        return [typed('9', f)]
    def readyload(self):
        def f():
            p = self.p
            p(f"v_mov_b32 v3, 0"); p(f"v_mov_b32 v{RDY}, 1"); p("s_lshl_b32 s39, s52, 2")
            self.masked(1, lambda: p(f"buffer_load_dword v{RDY}, v3, s[56:59], s39 offen sc1"))
        return [typed('9', f)]
    def readycheck(self):
        p = self.p
        p(f"v_cmp_ne_u32 vcc, 1, v{RDY}")
        p("s_cbranch_vccz L_rdy_ok")
        p(f"v_mov_b32 v3, 0"); p("s_lshl_b32 s39, s52, 2")
        p("L_rdy:")
        p("s_sleep 2")
        sv = (p.vm_seq, p.vm_done)
        p(f"buffer_load_dword v{RDY}, v3, s[56:59], s39 offen sc1")
        p.wait_all(vm=True, lg=False, force=True)
        p(f"v_cmp_ne_u32 vcc, 1, v{RDY}")
        p("s_cbranch_vccnz L_rdy")
        p.vm_seq, p.vm_done = sv; p.vm_pend[f"v{RDY}"] = 0
        p("L_rdy_ok:")
    def flagset(self, ph):
        p = self.p
        p(f"v_mov_b32 v3, 0"); p(f"v_mov_b32 v23, 1"); p("s_lshl_b32 s38, s37, 2")
        self.masked(1, lambda: p(f"buffer_store_dword v23, v3, s[64:67], s38 offen offset:{ph*128} sc1"))
    def lanemax(self, regs, tmps):
        p = self.p
        for sw in ("v_permlane32_swap_b32", "v_permlane16_swap_b32"):
            for r, t in zip(regs, tmps): p(f"v_mov_b32 v{t}, v{r}")
            for r, t in zip(regs, tmps): p(f"{sw} v{r}, v{t}")
            for r, t in zip(regs, tmps): p(f"v_max_f32 v{r}, v{r}, v{t}")

    def attention(self):
        p = self.p; o = self.o
        p.wait_vm(max(self.tokK[0], self.tokK[1]))
        p.wait_all(vm=False); p("s_barrier")
        for j in range(5):
            for ds in range(4):
                p(f"ds_read_b128 {ar(QB(ds,j))}, v23 offset:{ds*5120 + j*1024}")
                if j == 0 and ds == 3: pass
        self.pre_front = [t for c in sorted(o['front']) if c <= 9 for t in o['front'][c]]
        p("L_att:")
        self.m0key = None; self.s51val = None
        self.run(self.rdK(0))
        mf = []
        for j in range(5): mf += self.qk(0, j, "0")
        dm = []
        for t in o['front'].get(10, ()): dm += self.dmaT(t)
        M = [TMP + 4 + j for j in range(5)]; M2 = [TMP + 12 + j for j in range(5)]
        mx = []
        for j in range(5):
            a, b = S(j, 0), S(j, 1)
            mx.append([f"v_max3_f32 v{M[j]}, v{a}, v{a+1}, v{a+2}", f"v_max3_f32 v{M2[j]}, v{a+3}, v{b}, v{b+1}",
                       f"v_max3_f32 v{M[j]}, v{M[j]}, v{b+2}, v{b+3}", f"v_max_f32 v{M[j]}, v{M[j]}, v{M2[j]}"])
        fs = [(self.rdK(1), 4, 20), (dm, 0, 38)]
        for j in range(3): fs.append((mx[j], 8 * j + 14, 8 * j + 22))
        self.mix(mf, *fs)
        self.run(mx[3:])
        self.lanemax(M, M2)
        p(f"s_lshl_b32 s38, s32, 11"); p(f"s_add_u32 s38, s38, {MISC}"); p(f"v_add_u32 v3, s38, v{LIN}")
        p(f"ds_write_b128 v3, {vr(M[0])}"); p(f"ds_write_b32 v3, v{M[4]} offset:1024")
        p(f"v_xor_b32 v3, 4096, v3")
        p.wait_all(vm=False); p("s_barrier")
        p(f"ds_read_b128 {vr(M2[0])}, v3"); p(f"ds_read_b32 v{M2[4]}, v3 offset:1024")
        p.wait_all(vm=False)
        p("s_cmp_lg_u32 s50, 0"); p("s_cbranch_scc1 L_havem")
        for j in range(5):
            n = NEGM + 4 * j
            p(f"v_max_f32 v{M[j]}, v{M[j]}, v{M2[j]}")
            for i in range(4): p(f"v_sub_f32 v{n+i}, 0, v{M[j]}")
        p("L_havem:")
        for j in range(5):
            for kt in range(2):
                for hh in range(2):
                    b = S(j, kt) + 2 * hh
                    p(f"v_pk_add_f32 {vr(b,2)}, {vr(b,2)}, {vr(NEGM+4*j,2)}")
            self.run(self.expo(0, j))
        self.stamp("aprol")
        for s in range(16):
            toks = [self.tokV[s]]
            if s + 2 <= 15: toks.append(self.tokK[s + 2])
            if s == 15: toks.append(self.tokU[0])
            p.wait_bar(max(toks))
            self.stamp(f"it{s}")
            dm = []
            for i in range(16):
                if i < s + o['dV'] and i not in self.tokV: dm += self.dmaV(i); self.tokV[i] = None
            for i in range(16):
                if i <= s + o['dK'] and i not in self.tokK: dm += self.dmaK(i); self.tokK[i] = None
            for i in range(16):
                if i <= s + o['dV'] and i not in self.tokV: dm += self.dmaV(i); self.tokV[i] = None
            if s == 1: dm += self.flagzero()
            if s == 5: dm += self.readyset()
            if s == o['wotouch_it'] and o['wotouch']: dm += self.wotouch()
            if s == o['u0']: dm += self.dmaU(0)
            if s == o['u1']: dm += self.dmaU(1)
            if s == 14: dm += self.readyload()
            PV = [self.pv(s, j) for j in range(5)]
            rv = self.rdV(s); rp = self.rdP(s)
            early = rv[:8] + rp[:1] + rv[8:] + rp[1:]
            if s < 15:
                Q = [self.qk(s + 1, j, vr(NEGM + 4 * j)) for j in range(5)]
                mf = Q[0] + Q[1] + Q[2] + PV[0] + Q[3] + PV[1] + Q[4] + PV[2] + PV[3] + PV[4]
                def mark(): self.tokE = p.lg_seq
                def waitE(): p.wait_lg(self.tokE); p("s_nop 0")
                fs = [(early + [typed('Z', mark)], 0, 14), ([typed('2', waitE)], 21, 22)]
                for j in range(5): fs.append((self.expo(s + 1, j), 14 + 14 * j, 28 + 14 * j))
                if s + 2 <= 15: fs.append((self.rdK(s + 2), 24, 76))
                fs.append((dm, 0, o.get('dmhi', 64)))
                self.mix(mf, *fs, tag=f"it{s}")
            else:
                self.run(early)
                p(f"s_mov_b32 s40, {f2u(o['thr'])}")
                p("s_mov_b64 s[62:63], 0")
                mf = PV[0] + PV[1] + PV[2] + PV[3] + PV[4]
                fs = [(self.rdW(0), 0, 10), (dm, 0, 40)]
                fs.append((self.ofin(0) + self.ofin(1), 12, 50))
                self.mix(mf, *fs, tag="it15")
                for j in range(2, 5): self.run(self.ofin(j, True))
        self.stamp("adone")
        p("s_cmp_lg_u64 s[62:63], 0"); p("s_cselect_b32 s38, 1, 0")
        p(f"v_mov_b32 v3, s38"); p(f"s_lshl_b32 s39, s32, 2"); p(f"s_add_u32 s39, s39, {OG + 40960}"); p(f"v_mov_b32 v23, s39")
        p(f"ds_write_b32 v23, v3")
        p.wait_vm(self.tokU[1])
        p.wait_all(vm=False); p("s_barrier")
        self.stamp("pb")
    def ofin(self, j, pk=False):
        r = TMP + 2 * (j & 1); out = []
        out.append(f"v_accvgpr_read_b32 v{r}, a{LACC+4*j}")
        out += [f"v_cmp_nle_f32 vcc, v{r}, s40", f"v_rcp_f32_e64 v{r}, v{r}"]
        out.append("s_or_b64 s[62:63], s[62:63], vcc")
        for sl in range(2):
            t = TMP + 4 + ((2 * j + sl) % 4) * 4
            for k in range(2):
                a = O(2 * sl + k, j)
                if pk:
                    out.append(f"v_pk_mul_f32 {vr(a,2)}, {vr(a,2)}, {vr(r,2)} op_sel_hi:[1,0]")
                    out.append(f"v_pk_mul_f32 {vr(a+2,2)}, {vr(a+2,2)}, {vr(r,2)} op_sel_hi:[1,0]")
                else: out += [f"v_mul_f32_e64 v{a+i}, v{a+i}, v{r}" for i in range(4)]
                out.append(f"v_cvt_pk_bf16_f32 v{t+2*k}, v{a}, v{a+1}")
                out.append(f"v_cvt_pk_bf16_f32 v{t+2*k+1}, v{a+2}, v{a+3}")
            out.append(f"ds_write_b128 v{OGW}, {vr(t)} offset:{(sl*5+j)*1024}")
        return out
    def rdW(self, u):
        buf = UBUF[u % 3]; out = []
        W = WA(u & 1)
        win = 1 if buf >= 128 * K1 else 0; off = buf - win * 128 * K1
        if u < 8:
            for sg in range(4):
                for a in range(2):
                    for hh in range(2):
                        out.append(f"ds_read_b64_tr_b16 {ar(W+(sg*2+a)*4+2*hh,2)}, v{WRD+2*win+a} offset:{off+sg*8192+hh*4096}")
        else:
            assert win == 1
            for sg in range(8):
                for hh in range(2):
                    out.append(f"ds_read_b64_tr_b16 {ar(W+sg*4+2*hh,2)}, v{W4RD} offset:{off+sg*4096+hh*2048}")
        return out
    def rdO(self, sgs):
        out = []
        for sg in sgs:
            w2 = (sg >> 2) + 2 * ((sg >> 1) & 1)
            for j in range(5):
                out.append(f"ds_read_b128 {ar(OB(sg,j))}, v{OGR} offset:{w2*10240 + ((sg&1)*5+j)*1024}")
        return out
    def oproj(self):
        p = self.p; o = self.o; stflag = o['stflag']
        p(f"v_mov_b32 v23, {OG + 40960}")
        p(f"ds_read_b128 {vr(TMP+20)}, v23")
        self.run(self.rdO(range(4)))
        p(f"v_or3_b32 v{TMP+20}, v{TMP+20}, v{TMP+21}, v{TMP+22}")
        p(f"v_or_b32 v{TMP+20}, v{TMP+20}, v{TMP+23}")
        p(f"v_readfirstlane_b32 s38, v{TMP+20}")
        p("s_andn2_b32 s38, s38, s50")
        p("s_cbranch_scc1 L_fallback")
        def ACC(g, a, j): return OREG + (g & 1) * 40 + (a * 5 + j) * 4
        self.tokS = {}
        def stores(g):
            out = []
            for j in range(5):
                t = 28 + (j % 5) * 4
                if g < 4:
                    a, b = ACC(g, 0, j), ACC(g, 1, j)
                    out.append([f"v_cvt_pk_bf16_f32 v{t}, v{a}, v{a+1}", f"v_cvt_pk_bf16_f32 v{t+1}, v{a+2}, v{a+3}"])
                    out.append([f"v_cvt_pk_bf16_f32 v{t+2}, v{b}, v{b+1}", f"v_cvt_pk_bf16_f32 v{t+3}, v{b+2}, v{b+3}"])
                    def f(t=t, j=j):
                        self.tokS[g] = p(f"buffer_store_dwordx4 {vr(t)}, v{STA}, s[24:27], s3 offen{stflag}")
                    out += [f"s_mov_b32 s3, {g*20480+j*1024}", typed('W', f)]
                else:
                    a = ACC(g, 0, j); t = 48 + j * 2
                    out.append([f"v_cvt_pk_bf16_f32 v{t}, v{a}, v{a+1}", f"v_cvt_pk_bf16_f32 v{t+1}, v{a+2}, v{a+3}"])
                    def f(t=t, j=j):
                        self.tokS[g] = p(f"buffer_store_dwordx2 {vr(t,2)}, v{STB}, s[24:27], s3 offen{stflag}")
                    out += [f"s_mov_b32 s3, {81920+j*512}", typed('w', f)]
            return out
        for u in range(9):
            if u > 0:
                if u == 8: self.readycheck()
                p.wait_bar(self.tokU[u + 1] if u + 1 <= 8 else self.tokS[2])
            self.stamp(f"u{u}")
            if u == 8: self.flagset(0)
            dm = []
            if u == 0: dm += self.dmaU(2)
            if u + 3 <= 8: dm += self.dmaU(u + 3)
            W = WA(u & 1); g = u >> 1
            mf = []
            if u < 8:
                k = u & 1
                for sg in range(4):
                    for a in range(2):
                        for j in range(5):
                            c = "0" if (k == 0 and sg == 0) else vr(ACC(g, a, j))
                            mf.append(f"{MF} {vr(ACC(g,a,j))}, {ar(W+(sg*2+a)*4)}, {ar(OB(4*k+sg,j))}, {c}")
            else:
                for sg in range(8):
                    for j in range(5):
                        c = "0" if sg == 0 else vr(ACC(g, 0, j))
                        mf.append(f"{MF} {vr(ACC(g,0,j))}, {ar(W+sg*4)}, {ar(OB(sg,j))}, {c}")
            fs = []
            if u == 0: fs.append((self.rdO(range(4, 8)) + self.rdW(1), 2, 36))
            elif u + 1 <= 8: fs.append((self.rdW(u + 1), 0, 32))
            st = u >= 2 and u % 2 == 0
            if dm: fs.append((dm, 0, 22 if st else 38))
            if st: fs.append((stores(g - 1), 22 if dm else 2, 38 if dm else 24))
            if u == 7: fs.append((self.red_setup(), 0, 38))
            self.mix(mf, *fs, tag=f"u{u}")
        self.run(stores(4))
        self.stamp("odone")
    def red_setup(self):
        L = f"""s_lshl_b32 s38, s32, 4
        s_add_u32 s48, s38, s37
        v_and_b32 v1, 15, v0
        v_lshlrev_b32 v4, 2, v1
        v_bfe_u32 v5, v0, 4, 1
        v_lshl_add_u32 v4, v5, 7, v4
        v_lshrrev_b32 v2, 4, v0
        v_mul_u32_u24 v1, 2304, v1
        v_lshl_add_u32 v1, v2, 3, v1
        v_lshlrev_b32 v2, 3, v0
        s_mul_i32 s49, s36, {80*2304}
        s_mul_i32 s38, s35, 1152
        s_add_u32 s49, s49, s38
        s_mov_b32 s42, 0xffff0000
        s_lshl_b32 s54, s48, 10
        s_mul_hi_u32 s38, s48, 858993460
        s_mul_i32 s39, s38, 5
        s_sub_u32 s39, s48, s39
        s_mul_i32 s39, s39, {16*2304}
        s_lshl_b32 s60, s38, 6
        s_add_u32 s55, s49, s39
        s_add_u32 s61, s55, s60
        s_lshl_b32 s60, s38, 5
        s_add_u32 s60, s55, s60
        s_lshl_b32 s62, 0x10001, s37
        s_not_b32 s62, s62""".split("\n")
        return [x.strip() for x in L]
    def reduce(self):
        p = self.p; o = self.o; ld = o['ldflag']
        p(f"buffer_load_dword v5, v4, s[64:67], 0 offen sc1")
        p.wait_all(vm=True, lg=True, force=True)
        p("s_barrier")
        self.flagset(1)
        self.stamp("stack")
        def poll(lab, mask):
            p(f"{lab}:")
            p(f"v_cmp_ne_u32 vcc, 1, v5")
            p(f"s_and_b32 s38, vcc_lo, s62")
            p(f"s_and_b32 s38, s38, {mask}")
            p(f"s_cbranch_scc0 {lab}_ok")
            p("s_sleep 1")
            p(f"buffer_load_dword v5, v4, s[64:67], 0 offen sc1")
            p.wait_all(vm=True, lg=False, force=True)
            p(f"s_branch {lab}")
            p(f"{lab}_ok:")
        def loads(nreg, unit_s, add, lanev, base):
            lds = "buffer_load_dwordx4" if nreg == 4 else "buffer_load_dwordx2"
            for k in range(16):
                p(f"s_add_u32 s3, {unit_s}, {k*PART_BYTES + add}")
                p(f"{lds} {vr(base+k*nreg, nreg)}, v{lanev}, s[28:31], s3 offen{ld}")
        def summ(nreg, base, outs, off):
            for k in range(16):
                for r in range(nreg):
                    src = base + k * nreg + r
                    if k == 0:
                        p(f"v_lshlrev_b32 v{28+2*r}, 16, v{src}"); p(f"v_and_b32 v{29+2*r}, s42, v{src}")
                    else:
                        t = 36 + 2 * (r & 1)
                        p(f"v_lshlrev_b32 v{t}, 16, v{src}"); p(f"v_and_b32 v{t+1}, s42, v{src}")
                        p(f"v_pk_add_f32 {vr(28+2*r,2)}, {vr(28+2*r,2)}, {vr(t,2)}")
            for r in range(nreg):
                p(f"v_cvt_pk_bf16_f32 v{40+r}, v{28+2*r}, v{29+2*r}")
            p(f"buffer_store_dwordx2 v[40:41], v1, s[44:47], {outs} offen offset:{off}")
            if nreg == 4: p(f"buffer_store_dwordx2 v[42:43], v1, s[44:47], {outs} offen offset:{off+32}")
        p("s_cmp_ge_u32 s48, 60"); p("s_cbranch_scc1 L_fin")
        poll("L_pa", "0xffff")
        p.forget()
        loads(4, "s54", 0, LIN, 64)
        p("s_cmp_ge_u32 s48, 40"); p("s_cbranch_scc1 L_only1")
        p(f"v_cmp_ne_u32 vcc, 1, v5")
        p(f"s_and_b32 s38, vcc_lo, s62")
        p(f"s_and_b32 s38, s38, 0xffff0000")
        p("s_mov_b32 s63, 0")
        p(f"s_cbranch_scc0 L_go2")
        st = (p.vm_seq, p.vm_done, dict(p.vm_pend))
        summ(4, 64, "s61", 0)
        p("s_mov_b32 s63, 1")
        poll("L_pc", "0xffff0000")
        p("L_go2:")
        self.stamp("pollc")
        p("s_cmp_ge_u32 s48, 20"); p("s_cbranch_scc1 L_j3")
        loads(4, "s54", 61440, LIN, 128)
        p("s_cmp_lg_u32 s63, 0"); p("s_cbranch_scc1 L_j2b")
        p.ins.append(Ins("  s_waitcnt vmcnt(16)"))
        summ(4, 64, "s61", 0)
        p("L_j2b:")
        p.wait_all(vm=True, lg=False, force=True)
        summ(4, 128, "s61", 768)
        p("s_branch L_fin")
        p("L_j3:")
        p("s_lshr_b32 s54, s54, 1")
        loads(2, "s54", 81920 - 10240, 2, 128)
        p("s_cmp_lg_u32 s63, 0"); p("s_cbranch_scc1 L_j3b")
        p.ins.append(Ins("  s_waitcnt vmcnt(16)"))
        summ(4, 64, "s61", 0)
        p("L_j3b:")
        p.wait_all(vm=True, lg=False, force=True)
        summ(2, 128, "s60", 1024 - 128)
        p("s_branch L_fin")
        p("L_only1:")
        p.wait_all(vm=True, lg=False, force=True)
        summ(4, 64, "s61", 0)
        p("L_fin:")
        if o['stamps']:
            p.wait_all(force=True)
            self.stamp("end")
    def fallback(self):
        p = self.p; o = self.o
        p("L_fallback:")
        p.wait_all(force=True)
        p("s_barrier")
        p(f"""v_and_b32 v1, 15, v0
        v_lshrrev_b32 v2, 4, v0
        v_lshlrev_b32 v3, 8, v1
        v_lshl_add_u32 v3, v2, 5, v3
        s_mov_b32 s38, 0
        s_mov_b32 s39, 0xff800000""")
        M = [TMP + 4 + j for j in range(5)]; M2 = [TMP + 12 + j for j in range(5)]
        for j in range(5): p(f"v_mov_b32 v{M[j]}, s39")
        p("L_fb_loop:")
        for ds in range(4):
            p(f"buffer_load_dwordx4 {vr(PREG+4*ds)}, v3, s[8:11], s38 offen offset:{(ds>>1)*128+(ds&1)*16}")
        p.wait_all(force=True)
        for ds in range(4):
            for j in range(5):
                p(f"{MF} {vr(S(j,0))}, {vr(PREG+4*ds)}, {ar(QB(ds,j))}, {'0' if ds == 0 else vr(S(j,0))}")
        p("s_nop 7")
        for j in range(5):
            a = S(j, 0)
            p(f"v_max3_f32 v{M[j]}, v{M[j]}, v{a}, v{a+1}")
            p(f"v_max3_f32 v{M[j]}, v{M[j]}, v{a+2}, v{a+3}")
        p("s_add_u32 s38, s38, 4096")
        p("s_cmp_lt_u32 s38, 262144")
        p("s_cbranch_scc1 L_fb_loop")
        self.lanemax(M, M2)
        for j in range(5):
            for i in range(4): p(f"v_sub_f32 v{NEGM+4*j+i}, 0, v{M[j]}")
        p(f"v_mov_b32 v3, 0x3f803f80")
        for i in range(4): p(f"v_accvgpr_write_b32 a{ONES+i}, v3")
        p("s_mov_b32 s50, 1")
        self.m0key = None; self.s51val = None
        for t in self.pre_front: self.run(self.dmaT(t))
        p.wait_all(force=True)
        p("s_barrier")
        p("s_branch L_att")
    def dump_stamps(self):
        if not self.o['stamps']: return
        p = self.p
        p("s_cmp_lg_u32 s32, 0"); p("s_cbranch_scc1 L_end")
        p("s_load_dwordx2 s[28:29], s[0:1], 96"); p("s_waitcnt lgkmcnt(0)")
        p(f"s_add_u32 s28, s28, {STAMP_OFF}"); p("s_addc_u32 s29, s29, 0"); p(f"s_mov_b32 s30, {1<<20}"); p("s_mov_b32 s31, 0x20000")
        p("s_mul_i32 s38, s2, 160"); p("v_mov_b32 v1, s38")
        p("v_cmp_eq_u32 vcc, 0, v0"); p("s_and_saveexec_b64 s[38:39], vcc")
        for i in range(self.nst):
            p(f"v_mov_b32 v2, s{ST0+2*i}"); p(f"v_mov_b32 v3, s{ST0+1+2*i}")
            p(f"buffer_store_dwordx2 v[2:3], v1, s[28:31], 0 offen offset:{8*i}")
        p.wait_all(force=True)

def kd(name, vgpr, accum, sgpr=102):
    return f""".amdhsa_kernel {name}
  .amdhsa_next_free_vgpr {vgpr}
  .amdhsa_next_free_sgpr {sgpr}
  .amdhsa_accum_offset {accum}
  .amdhsa_group_segment_fixed_size 0
  .amdhsa_kernarg_size 104
  .amdhsa_user_sgpr_count 2
  .amdhsa_user_sgpr_kernarg_segment_ptr 1
  .amdhsa_system_sgpr_workgroup_id_x 1
  .amdhsa_float_denorm_mode_32 3
.end_amdhsa_kernel
"""

def build(**o):
    g = Gen(**o)
    g.prologue(); g.qproj(); g.attention(); g.oproj(); g.reduce(); g.dump_stamps()
    g.p("L_end:"); g.p("s_endpgm")
    g.fallback()
    g.p.finalize()
    if o.get('align', True):
        r = align(g.p)
        if o.get('verbose'): print("align: bytes, widened, nops", r)
    hdr = open("cdna_kernels/" + NAME + ".s.ref").read().split("; Override launch")[0]
    out = hdr
    out += f"; @launch grid=(256,1,1) block=(256,1,1) lds=163840\n"
    if g.stn: out += "; stamps: " + " ".join(g.stn) + "\n"
    out += '.amdgcn_target "amdgcn-amd-amdhsa--gfx950"\n.text\n'
    out += f".globl {NAME}_kernel\n.p2align 8\n.type {NAME}_kernel,@function\n{NAME}_kernel:\n" + g.p.text()
    out += '.section .rodata,"a"\n.p2align 6\n' + kd(NAME + "_kernel", 512, 256)
    return out

if __name__ == "__main__":
    B = "c6 c8 qdone aprol it1 it2 it8 it14 it15 adone pb u1 u8 odone".split()
    C = "c0 c6 aprol it4 it8 it12 it15 adone u4 odone stack pollc end".split()
    open("k4_nt.s", "w").write(build(verbose=True))
    open("k4_def.s", "w").write(build(kv=""))
    open("k4_fb.s", "w").write(build(thr=1e-3))
    open("k4_C_st.s", "w").write(build(stamps=True, stampset=C))
    open("k4_Cnr_st.s", "w").write(build(stamps=True, stampset=C, kvrot=False))
    open("k4_Bcyc_st.s", "w").write(build(stamps=True, stampset=B, cyc=True))
    open("k4_Bcycna_st.s", "w").write(build(stamps=True, stampset=B, cyc=True, align=False))
```

```python
import sys, struct, math
from asmlib import *
NAME = "concat_heads__gqa_block_cached__gqa_block_cached__near_ridge"

def vr(b, n=4): return f"v[{b}:{b+n-1}]"
def ar(b, n=4): return f"a[{b}:{b+n-1}]"
def f2u(x): return struct.unpack('<I', struct.pack('<f', x))[0]
K1 = 1024
def KSLOT(s): return (s % 4) * 16384
VWIN = 64 * K1
def VSLOT(s): return VWIN + (s % 3) * 16384
PX = 112 * K1
MISC = 152 * K1
QX = PX
OG = 80 * K1
WBUF = [64 * K1, 32 * K1, 96 * K1]; XRING = 128 * K1
UBUF = [0, 32 * K1, 128 * K1]
PART_BYTES = 92160
STAMP_OFF = 200 << 20
FLAG_OFF = 64 << 20
KRD = 4; VRD = 8; KDMA = 16; VDMA = 20; LIN = 22; WD = 24; DUMMY = 27
NEGM = 28; SREG = 48; PREG = 88; OREG = 128
PW = 208; PR = 209; OGW = 210; OGR = 211; WRD = 212; W4RD = 216; STA = 217; STB = 218; RDY = 219; TMP = 220
def S(j, kt): return SREG + (j * 2 + kt) * 4
def PO_(st, j): return PREG + (st * 5 + j) * 4
def O(tt, j): return OREG + (tt * 5 + j) * 4
def QB(ds, j): return (ds * 5 + j) * 4
def KA(st, kt, ds): return 80 + st * 32 + (kt * 4 + ds) * 4
def VA(k, tt): return 144 + (k * 4 + tt) * 4
def POT(j): return 176 + j * 4
LACC = 196; ONES = 216
XRD = 48; XD = 50; WQD = 52; TID = 54; WQRD = 56
def QACC(tt, qt): return OREG + (tt * 5 + qt) * 4
def XF(st, e, qt): return st * 72 + (e * 5 + qt) * 4
def WF(st, e, tt): return st * 72 + 40 + (e * 4 + tt) * 4
def OB(sg, j): return (144 if sg < 4 else 0) + ((sg & 3) * 5 + j) * 4
def WA(st): return 80 + st * 32
MF = "v_mfma_f32_16x16x32_bf16"
ST0 = 72

class Gen:
    def __init__(self, **o):
        self.o = dict(kv=" nt", stamps=False, codetouch=True, wotouch=True, code_bytes=48384, ct0=16384,
                      stflag=" sc1", ldflag=" sc1", dK=4, dV=2, u0=13, u1=14, wotouch_it=12, thr=2.0 ** 40,
                      front={0: ['K0', 'K1'], 6: ['V0'], 7: ['K2'], 8: ['V1'], 9: ['K3']})
        self.o.update(o)
        self.p = Prog(); self.nst = 0; self.stn = []
        self.tokK = {}; self.tokV = {}; self.tokU = {}
    def stamp(self, name=""):
        if not self.o['stamps']: return
        if self.o.get('stampset') and name not in self.o['stampset']: return
        p = self.p
        assert self.nst < 15
        p.wait_all(vm=False, lg=True)
        p(f"{'s_memtime' if self.o.get('cyc') else 's_memrealtime'} s[{ST0+2*self.nst}:{ST0+1+2*self.nst}]")
        p("s_waitcnt lgkmcnt(0)")
        self.nst += 1; self.stn.append(name)
    def run(self, items):
        for it in items:
            if callable(it): it()
            elif isinstance(it, (list, tuple)): self.run(it)
            else: self.p(it)
    def flat(self, items):
        out = []
        for it in items:
            if isinstance(it, (list, tuple)): out += self.flat(it)
            else: out.append(it)
        return out
    def mix(self, mf, *fillsets, tag=None):
        slots = schedule(len(mf), [(self.flat(fl), st, en) for fl, st, en in fillsets])
        if tag and self.o.get('verbose'): print(tag, "est cycles", est(slots), "mfma", len(mf) * 16)
        for m, sl in zip(mf, slots):
            self.p(m); self.run(sl)
    m0key = None; s51val = None
    def setm0(self, imm, sreg="s43"):
        key = (sreg, imm)
        if self.m0key != key:
            self.m0key = key; return [f"s_add_u32 m0, {sreg}, {imm if imm > 64 else '0x%x' % imm}"]
        return []
    def sets51(self, v):
        if self.s51val != v:
            self.s51val = v; return [f"s_mov_b32 s51, {v}"]
        return []
    def setkv(self, s):
        if self.s51val != ('kv', s):
            self.s51val = ('kv', s)
            return [f"s_add_u32 s51, s49, {s*16384}", "s_and_b32 s51, s51, 0x3ffff"]
        return []
    def dmaK(self, s):
        out = []
        for n in range(4):
            out += self.setm0(KSLOT(s)) + self.setkv(s)
            def f(n=n):
                self.tokK[s] = self.p(f"buffer_load_dwordx4 v{KDMA+n}, s[8:11], s51 offen offset:{n*1024}{self.o['kv']} lds")
            out.append(typed('D', f))
        return out
    def dmaV(self, s):
        out = []
        for n in range(4):
            out += self.setm0(VSLOT(s)) + self.setkv(s)
            def f(n=n):
                self.tokV[s] = self.p(f"buffer_load_dwordx4 v{VDMA+(n&1)}, s[12:15], s51 offen offset:{n*1024}{self.o['kv']} lds")
            out.append(typed('D', f))
        return out
    def dmaT(self, t):
        return self.dmaK(int(t[1:])) if t[0] == 'K' else self.dmaV(int(t[1:]))
    def dmaU(self, u):
        out = []
        buf = UBUF[u % 3]
        for n in range(8):
            out += self.setm0(buf + (n & 4) * 1024, "s53")
            if u < 8:
                g, k = u >> 1, u & 1
                so = k * 128 * 1152 + g * 256 + n * 4608 - 1024 * (n & 3); v = WD + (n & 1)
            else:
                so = 1024 + n * 9216 - 1024 * (n & 3); v = WD + 2
            out += self.sets51(so)
            def f(n=n, v=v):
                self.tokU[u] = self.p(f"buffer_load_dwordx4 v{v}, s[20:23], s51 offen offset:{(n&3)*1024} lds")
            out.append(typed('D', f))
        return out
    def rdK(self, s):
        st = s & 1
        return [f"ds_read_b128 {ar(KA(st,kt,ds))}, v{KRD+ds} offset:{KSLOT(s)+kt*4096}" for ds in range(4) for kt in range(2)]
    def rdV(self, s):
        return [f"ds_read_b64_tr_b16 {ar(VA(k,tt)+2*hh,2)}, v{VRD+4*k+tt} offset:{VSLOT(s)-VWIN+hh*4096}" for k in range(2) for tt in range(4) for hh in range(2)]
    def rdP(self, s):
        return [f"ds_read_b128 {ar(POT(j))}, v{PR} offset:{(s&1)*20480+j*1024}" for j in range(5)]
    def qk(self, s, j, cinit):
        st = s & 1; out = []
        for ds in range(4):
            for kt in range(2):
                c = cinit if ds == 0 else vr(S(j, kt))
                out.append(f"{MF} {vr(S(j,kt))}, {ar(KA(st,kt,ds))}, {ar(QB(ds,j))}, {c}")
        return out
    def pv(self, s, j):
        Pn = vr(PO_(s & 1, j)); Pt = ar(POT(j)); L = ar(LACC + 4 * j); out = []
        out.append(f"{MF} {L}, {ar(ONES)}, {Pn}, {'0' if s == 0 else L}")
        for tt in range(4):
            out.append(f"{MF} {vr(O(tt,j))}, {ar(VA(0,tt))}, {Pn}, {'0' if s == 0 else vr(O(tt,j))}")
        out.append(f"{MF} {L}, {ar(ONES)}, {Pt}, {L}")
        for tt in range(4):
            out.append(f"{MF} {vr(O(tt,j))}, {ar(VA(1,tt))}, {Pt}, {vr(O(tt,j))}")
        return out
    def expo(self, s, j):
        P = PO_(s & 1, j)
        b0, b1 = S(j, 0), S(j, 1)
        return [f"v_exp_f32_e64 v{b0}, v{b0}", f"v_exp_f32_e64 v{b0+1}, v{b0+1}", f"v_exp_f32_e64 v{b0+2}, v{b0+2}",
               f"v_cvt_pk_bf16_f32 v{P}, v{b0}, v{b0+1}", f"v_exp_f32_e64 v{b0+3}, v{b0+3}",
               f"v_exp_f32_e64 v{b1}, v{b1}", f"v_cvt_pk_bf16_f32 v{P+1}, v{b0+2}, v{b0+3}",
               f"v_exp_f32_e64 v{b1+1}, v{b1+1}", f"v_exp_f32_e64 v{b1+2}, v{b1+2}",
               f"v_cvt_pk_bf16_f32 v{P+2}, v{b1}, v{b1+1}", f"v_exp_f32_e64 v{b1+3}, v{b1+3}",
               f"v_cvt_pk_bf16_f32 v{P+3}, v{b1+2}, v{b1+3}",
               f"ds_write_b128 v{PW}, {vr(P)} offset:{(s&1)*20480+j*1024}"]
    def codetouch(self, lo, hi, tid):
        p = self.p
        n = (hi - lo + 16383) // 16384
        for i in range(n):
            p(f"v_lshlrev_b32 v{TMP}, 6, v{tid}")
            p(f"v_add_u32 v{TMP}, {lo + i*16384}, v{TMP}")
            p(f"v_min_u32 v{TMP}, {hi - 8}, v{TMP}")
            p(f"v_mov_b32 v{TMP+1}, s69")
            p(f"v_add_co_u32 v{TMP}, vcc, s68, v{TMP}")
            p(f"v_addc_co_u32 v{TMP+1}, vcc, 0, v{TMP+1}, vcc")
            p(f"global_load_dword v{DUMMY}, {vr(TMP,2)}, off")

    def prologue(self):
        p = self.p; o = self.o
        p("s_getpc_b64 s[68:69]")
        p("s_cmp_ge_u32 s2, 256"); p("s_cbranch_scc1 L_end")
        if o['stamps']:
            p(f"{'s_memtime' if o.get('cyc') else 's_memrealtime'} s[{ST0}:{ST0+1}]"); self.nst = 1; self.stn.append("start")
        p("""s_lshr_b32 s35, s2, 2
        s_and_b32 s35, s35, 1
        s_mul_i32 s38, s35, 40
        s_add_u32 s38, s0, s38
        s_addc_u32 s39, s1, 0
        s_load_dwordx8 s[44:51], s[38:39], 0
        s_load_dwordx2 s[52:53], s[38:39], 32
        s_load_dwordx4 s[56:59], s[0:1], 80
        s_load_dwordx2 s[54:55], s[0:1], 96""")
        p(f"v_mov_b32 v{TID}, v0")
        p("""s_and_b32 s38, s2, 3
        s_lshr_b32 s39, s2, 3
        s_and_b32 s36, s39, 7
        s_lshr_b32 s39, s39, 3
        s_lshl_b32 s38, s38, 2
        s_add_u32 s37, s38, s39
        v_lshrrev_b32 v1, 6, v0
        v_and_b32 v0, 63, v0
        v_readfirstlane_b32 s32, v1
        v_and_b32 v1, 15, v0
        v_lshrrev_b32 v2, 4, v0
        s_and_b32 s33, s32, 1
        s_lshr_b32 s34, s32, 1""")
        p(f"""s_lshl_b32 s39, s39, 1
        s_add_u32 s66, s36, s39
        s_sub_u32 s39, s66, 9
        s_cmp_ge_u32 s66, 9
        s_cselect_b32 s66, s39, s66""")
        p(f"""s_lshl_b32 s38, s33, 2
        v_add_u32 v3, s38, v2
        v_and_b32 v23, 7, v0
        v_xor_b32 v3, v3, v23
        v_lshlrev_b32 v3, 4, v3
        v_lshrrev_b32 v23, 3, v0
        v_mul_u32_u24 v23, 1152, v23
        v_add_u32 v{XD}, v3, v23""")
        p(f"""s_lshl_b32 s38, s32, 17
        v_lshlrev_b32 v3, 13, v2
        v_add_u32 v3, s38, v3
        v_lshlrev_b32 v23, 1, v2
        v_xor_b32 v23, v1, v23
        v_lshl_add_u32 v{WQD}, v23, 4, v3
        v_xor_b32 v23, 8, v23
        v_lshl_add_u32 v{WQD+1}, v23, 4, v3""")
        p(f"""s_lshl_b32 s60, s32, 10
        s_lshl_b32 s61, s33, 10
        s_mul_i32 s63, s32, 9216
        s_mul_i32 s65, s33, 9216
        s_lshl_b32 s43, s32, 12
        s_mul_i32 s42, s36, 92160
        s_mov_b32 s6, 92160
        s_mov_b32 s7, 0x20000
        s_lshl_b32 s38, s37, 9
        s_sub_u32 s18, {576*8192}, s38
        s_mov_b32 s19, 0x20000""")
        p("s_waitcnt lgkmcnt(0)")
        p(f"""s_add_u32 s4, s44, s42
        s_addc_u32 s5, s45, 0
        s_add_u32 s16, s50, s38
        s_addc_u32 s17, s51, 0""")
        self.stamp("karg")
    def srd_rest(self):
        self.p(f"""s_lshl_b32 s38, s36, 4
        s_add_u32 s38, s38, s37
        s_lshl_b32 s38, s38, 18
        s_add_u32 s8, s46, s38
        s_addc_u32 s9, s47, 0
        s_mov_b32 s10, 262144
        s_mov_b32 s11, 0x20000
        s_add_u32 s12, s48, s38
        s_addc_u32 s13, s49, 0
        s_mov_b32 s14, 262144
        s_mov_b32 s15, 0x20000
        s_mul_i32 s38, s37, {256*1152}
        s_add_u32 s20, s52, s38
        s_addc_u32 s21, s53, 0
        s_mov_b32 s22, {256*1152}
        s_mov_b32 s23, 0x20000
        s_lshl_b32 s53, s32, 13
        s_lshl_b32 s52, s35, 3
        s_add_u32 s52, s52, s36
        s_mul_i32 s38, s52, {16*PART_BYTES}
        s_add_u32 s28, s54, s38
        s_addc_u32 s29, s55, 0
        s_mov_b32 s30, {16*PART_BYTES}
        s_mov_b32 s31, 0x20000
        s_mul_i32 s38, s37, {PART_BYTES}
        s_add_u32 s24, s28, s38
        s_addc_u32 s25, s29, 0
        s_mov_b32 s26, {PART_BYTES}
        s_mov_b32 s27, 0x20000
        s_mov_b32 s44, s56
        s_mov_b32 s45, s57
        s_mov_b32 s46, {8*80*1152*2}
        s_mov_b32 s47, 0x20000
        s_mov_b32 s56, s58
        s_mov_b32 s57, s59
        s_mov_b32 s58, 256
        s_mov_b32 s59, 0x20000
        s_mov_b32 s50, 0
        s_lshr_b32 s38, s2, 3
        s_and_b32 s39, s2, 7
        s_lshl_b32 s39, s39, 1
        s_add_u32 s38, s38, s39
        s_and_b32 s38, s38, {15 if self.o.get('kvrot', True) else 0}
        s_lshl_b32 s49, s38, 14""")
    def srd_flag(self):
        self.p(f"""s_lshl_b32 s38, s52, 9
        s_add_u32 s38, s38, {FLAG_OFF}
        s_add_u32 s64, s54, s38
        s_addc_u32 s65, s55, 0
        s_mov_b32 s66, 512
        s_mov_b32 s67, 0x20000""")
    def dmaQ(self, c):
        p = self.p; out = []
        WB = WBUF[c % 3]; XBc = XRING + (c % 3) * 10240
        def ld(txt):
            def f(): self.tokQ[c] = p(txt)
            return typed('D', f)
        def rotstep():
            p("s_add_u32 s66, s66, 1"); p("s_cmp_eq_u32 s66, 9"); p("s_cselect_b32 s66, 0, s66")
        out += ["s_lshl_b32 s62, s66, 19", "s_lshl_b32 s64, s66, 7", "s_add_u32 s40, s63, s64", "s_add_u32 s41, s65, s64"]
        out += self.setm0(XBc, "s60") + [ld(f"buffer_load_dwordx4 v{XD}, s[4:7], s40 offen lds")]
        out += [typed('3', rotstep)]
        out += self.setm0(XBc + 4096, "s60") + [f"s_add_u32 s3, s40, {4*9216}", ld(f"buffer_load_dwordx4 v{XD}, s[4:7], s3 offen lds")]
        out += self.setm0(XBc + 8192, "s61") + [f"s_add_u32 s3, s41, {8*9216}", ld(f"buffer_load_dwordx4 v{XD}, s[4:7], s3 offen lds")]
        for h in range(2):
            for n in range(4):
                out += self.setm0(WB + h * 16384)
                out += [f"s_add_u32 s3, s62, {n*(32768-1024) + h*256}",
                        ld(f"buffer_load_dwordx4 v{WQD+(n>>1)}, s[16:19], s3 offen offset:{n*1024} lds")]
        return out
    def rdQ(self, c):
        st = c & 1; out = []
        for e in range(2):
            out += [f"ds_read_b128 {ar(XF(st,e,qt))}, v{XRD+e} offset:{(c%3)*10240+qt*2048}" for qt in range(5)]
            for tt in range(4):
                for hh in range(2):
                    out.append(f"ds_read_b64_tr_b16 {ar(WF(st,e,tt)+2*hh,2)}, v{WQRD+4*(c%3)+tt} offset:{e*8192+hh*1024}")
        return out
    def addr_dma(self):
        p = self.p
        p(f"""v_lshlrev_b32 v3, 8, v2
        v_add_u32 v3, s43, v3
        v_xor_b32 v23, v1, v2""")
        for n in range(4):
            p(f"v_xor_b32 v24, {4*n}, v23"); p(f"v_lshl_add_u32 v{KDMA+n}, v24, 4, v3")
        p(f"v_lshlrev_b32 v23, 1, v2"); p(f"v_xor_b32 v23, v1, v23")
        for n in range(2):
            p(f"v_xor_b32 v24, {8*n}, v23"); p(f"v_lshl_add_u32 v{VDMA+n}, v24, 4, v3")
    def addr_q(self):
        p = self.p
        p(f"v_lshlrev_b32 v{LIN}, 4, v0")
        p(f"""v_lshrrev_b32 v3, 1, v1
        v_xor_b32 v3, v3, v2
        v_lshlrev_b32 v23, 7, v1
        v_add_u32 v23, {XRING}, v23
        v_lshl_add_u32 v{XRD}, v3, 4, v23
        v_xor_b32 v3, 4, v3
        v_lshl_add_u32 v{XRD+1}, v3, 4, v23""")
        p(f"""v_bfe_u32 v3, v0, 2, 2
        v_lshl_add_u32 v23, v2, 3, v3
        v_lshlrev_b32 v23, 8, v23
        v_and_b32 v24, 3, v0
        v_lshl_add_u32 v23, v24, 3, v23
        s_lshl_b32 s38, s33, 14
        v_add_u32 v23, s38, v23
        v_bfe_u32 v3, v0, 2, 3
        s_lshl_b32 s39, s34, 2
        v_xor_b32 v3, s39, v3""")
        for tt in range(4):
            p(f"v_xor_b32 v24, {tt}, v3"); p(f"v_lshl_add_u32 v24, v24, 5, v23")
            for k in range(3): p(f"v_add_u32 v{WQRD+4*k+tt}, {WBUF[k]}, v24")
    def addr_rest(self):
        L = []
        a = lambda t: L.extend(x.strip() for x in t.split("\n") if x.strip())
        a(f"""s_lshl_b32 s38, s34, 13
        v_lshlrev_b32 v23, 8, v1
        v_add_u32 v23, s38, v23
        v_lshlrev_b32 v3, 1, v2
        v_xor_b32 v3, v3, v1""")
        for ds in range(4):
            a(f"v_xor_b32 v24, {8*(ds>>1)+(ds&1)}, v3"); a(f"v_lshl_add_u32 v{KRD+ds}, v24, 4, v23")
        a(f"""v_lshrrev_b32 v3, 2, v0
        v_lshlrev_b32 v23, 8, v3
        v_and_b32 v24, 3, v0
        v_lshl_add_u32 v{TMP+2}, v24, 3, v23
        v_add_u32 v23, s38, v{TMP+2}
        v_add_u32 v23, {VWIN}, v23
        v_and_b32 v{TMP+3}, 7, v3
        s_lshl_b32 s39, s34, 2
        v_xor_b32 v3, s39, v{TMP+3}""")
        for tt in range(4):
            a(f"v_xor_b32 v24, {tt}, v3"); a(f"v_lshl_add_u32 v{VRD+tt}, v24, 5, v23"); a(f"v_xor_b32 v{VRD+4+tt}, 8192, v{VRD+tt}")
        a(f"""s_lshl_b32 s39, s32, 1
        v_xor_b32 v3, s39, v{TMP+3}
        v_lshl_add_u32 v{WRD}, v3, 5, v{TMP+2}
        v_xor_b32 v3, 1, v3
        v_lshl_add_u32 v{WRD+1}, v3, 5, v{TMP+2}
        v_add_u32 v{WRD+2}, {128*K1}, v{WRD}
        v_add_u32 v{WRD+3}, {128*K1}, v{WRD+1}
        v_lshrrev_b32 v3, 2, v0
        v_lshlrev_b32 v23, 7, v3
        v_and_b32 v24, 3, v0
        v_lshl_add_u32 v23, v24, 3, v23
        v_bfe_u32 v3, v0, 3, 2
        v_xor_b32 v3, s32, v3
        v_lshl_add_u32 v{W4RD}, v3, 5, v23
        v_add_u32 v{W4RD}, {128*K1}, v{W4RD}
        s_mul_i32 s39, s32, 5120
        v_add_u32 v{STA}, s39, v{LIN}
        v_add_u32 v{PW}, {PX}, v{STA}
        s_xor_b32 s38, s32, 2
        s_mul_i32 s38, s38, 5120
        s_add_u32 s38, s38, {PX}
        v_add_u32 v{PR}, s38, v{LIN}
        s_mul_i32 s39, s32, 2560
        v_lshlrev_b32 v{STB}, 3, v0
        v_add_u32 v{STB}, s39, v{STB}
        v_add_u32 v{OGR}, {OG}, v{LIN}
        s_mul_i32 s39, s32, 10240
        v_add_u32 v{OGW}, s39, v{OGR}
        v_mov_b32 v3, 0x3f803f80""")
        for i in range(4): a(f"v_accvgpr_write_b32 a{ONES+i}, v3")
        a(f"""s_lshl_b32 s38, s32, 5
        v_add_u32 v3, s38, v2
        v_mul_u32_u24 v3, 1152, v3
        v_lshlrev_b32 v23, 1, v2
        v_xor_b32 v23, v1, v23
        v_lshl_add_u32 v{WD}, v23, 4, v3
        v_xor_b32 v23, 8, v23
        v_lshl_add_u32 v{WD+1}, v23, 4, v3
        s_lshl_b32 s38, s32, 6
        v_lshrrev_b32 v3, 3, v0
        v_add_u32 v3, s38, v3
        v_mul_u32_u24 v3, 1152, v3
        v_bfe_u32 v23, v0, 1, 2
        v_xor_b32 v23, v23, v2
        v_lshl_add_u32 v3, v23, 5, v3
        v_and_b32 v23, 1, v0
        v_lshl_add_u32 v{WD+2}, v23, 4, v3""")
        return L
    def wotouch(self):
        def f():
            p = self.p
            p(f"v_lshlrev_b32 v3, 7, v0")
            p(f"s_lshl_b32 s38, s36, 2")
            p(f"s_add_u32 s38, s38, s32")
            p(f"s_mul_i32 s38, s38, {72*128}")
            p(f"buffer_load_dword v{DUMMY}, v3, s[20:23], s38 offen")
            p(f"v_and_b32 v3, {7*128}, v3")
            p(f"s_add_u32 s38, s38, {8192}")
            p(f"buffer_load_dword v{DUMMY}, v3, s[20:23], s38 offen")
        return [typed('8', f)]

    def qproj(self):
        p = self.p; o = self.o
        self.tokQ = {}
        if o['codetouch']: self.codetouch(0, o['ct0'], TID)
        self.run(self.dmaQ(0))
        self.addr_q()
        self.srd_rest()
        self.addr_dma()
        self.run(self.dmaQ(1))
        self.stamp("q01i")
        p.wait_vm(self.tokQ[0])
        p("s_barrier")
        self.stamp("q0")
        self.run(self.rdQ(0))
        self.run(self.dmaQ(2))
        self.run(self.addr_rest())
        for c in range(9):
            st = c & 1
            p.wait_bar(self.tokQ[c + 1] if c + 1 <= 8 else None)
            self.stamp(f"c{c}")
            mf = [f"{MF} {vr(QACC(tt,qt))}, {ar(WF(st,e,tt))}, {ar(XF(st,e,qt))}, {'0' if (c == 0 and e == 0) else vr(QACC(tt,qt))}"
                  for e in range(2) for qt in range(5) for tt in range(4)]
            fs = []
            if c + 1 <= 8: fs.append((self.rdQ(c + 1), 0, 32))
            dm = []
            if c + 3 <= 8: dm = self.dmaQ(c + 3)
            for t in o['front'].get(c, ()): dm = dm + self.dmaT(t)
            if c == 5 and o['codetouch']: dm = dm + [typed('9', lambda: self.codetouch(o['ct0'], o['code_bytes'], TID))]
            fs.append((dm, 0, 36))
            if c == 8:
                cc = math.log2(math.e) / math.sqrt(128.0)
                pre = f"""s_mov_b32 s40, {f2u(cc)}
                s_mov_b32 s41, {f2u(cc)}
                s_mul_i32 s42, s33, 20480
                s_mul_i32 s3, s34, 10240
                s_add_u32 s3, s42, s3
                s_add_u32 s3, s3, {QX}
                v_lshlrev_b32 v3, 4, v1
                v_add_u32 v3, s3, v3
                v_bfe_u32 v23, v0, 4, 1
                v_lshl_add_u32 v3, v23, 3, v3
                v_lshrrev_b32 v23, 5, v0
                v_mul_u32_u24 v23, 5120, v23
                v_add_u32 v3, v3, v23
                s_add_u32 s42, s42, {QX}
                v_add_u32 v23, s42, v{LIN}""".split("\n")
                fs.append(([x.strip() for x in pre], 0, 20))
                fs.append((self.qfin(0), 26, 40))
            self.mix(mf, *fs, tag=f"c{c}")
        self.stamp("qdone")
        for qt in range(1, 5): self.run(self.qfin(qt, True))
        self.srd_flag()
        for t in o['front'].get(9, ()): self.run(self.dmaT(t))
    def qfin(self, qt, pk=False):
        out = []
        for tt in range(4):
            b = QACC(tt, qt); t = TMP + 4 + ((qt * 4 + tt) % 8) * 2
            if pk: out += [f"v_pk_mul_f32 {vr(b,2)}, {vr(b,2)}, s[40:41]", f"v_pk_mul_f32 {vr(b+2,2)}, {vr(b+2,2)}, s[40:41]"]
            else: out += [f"v_mul_f32_e64 v{b+i}, s40, v{b+i}" for i in range(4)]
            out += [f"v_cvt_pk_bf16_f32 v{t}, v{b}, v{b+1}", f"v_cvt_pk_bf16_f32 v{t+1}, v{b+2}, v{b+3}",
                    f"ds_write_b64 v3, {vr(t,2)} offset:{qt*1024+tt*256}"]
        return out

    def masked(self, nl, body, sel="s32"):
        p = self.p
        p(f"s_cmp_eq_u32 {sel}, 0")
        p(f"s_cselect_b32 s70, {'-1' if nl == 32 else (1 << nl) - 1}, 0")
        p(f"s_mov_b32 s71, 0")
        p(f"s_mov_b64 exec, s[70:71]")
        r = body()
        p("s_mov_b64 exec, -1")
        return r
    def flagzero(self):
        def f():
            p = self.p
            p(f"v_and_b32 v3, 15, v0"); p(f"v_lshlrev_b32 v3, 2, v3"); p(f"v_bfe_u32 v23, v0, 4, 1"); p(f"v_lshl_add_u32 v3, v23, 7, v3")
            p(f"v_mov_b32 v23, 0"); p("s_or_b32 s38, s37, s32")
            self.tokZ = self.masked(32, lambda: p(f"buffer_store_dword v23, v3, s[64:67], 0 offen sc1"), "s38")
        return [typed('9', f)]
    def readyset(self):
        def f():
            p = self.p
            p.wait_vm(self.tokZ)
            p(f"v_mov_b32 v3, 0"); p(f"v_mov_b32 v23, 1"); p("s_lshl_b32 s39, s52, 2"); p("s_or_b32 s38, s37, s32")
            self.masked(1, lambda: p(f"buffer_store_dword v23, v3, s[56:59], s39 offen offset:64 sc1"), "s38")
        return [typed('9', f)]
    def readyload(self):
        def f():
            p = self.p
            p(f"v_mov_b32 v3, 0"); p(f"v_mov_b32 v{RDY}, 1"); p("s_lshl_b32 s39, s52, 2")
            self.masked(1, lambda: p(f"buffer_load_dword v{RDY}, v3, s[56:59], s39 offen offset:64 sc1"))
        return [typed('9', f)]
    def readycheck(self):
        p = self.p
        p(f"v_cmp_ne_u32 vcc, 1, v{RDY}")
        p("s_cbranch_vccz L_rdy_ok")
        p(f"v_mov_b32 v3, 0"); p("s_lshl_b32 s39, s52, 2")
        p("L_rdy:")
        p("s_sleep 2")
        sv = (p.vm_seq, p.vm_done)
        p(f"buffer_load_dword v{RDY}, v3, s[56:59], s39 offen offset:64 sc1")
        p.wait_all(vm=True, lg=False, force=True)
        p(f"v_cmp_ne_u32 vcc, 1, v{RDY}")
        p("s_cbranch_vccnz L_rdy")
        p.vm_seq, p.vm_done = sv; p.vm_pend[f"v{RDY}"] = 0
        p("L_rdy_ok:")
    def flagset(self, ph):
        p = self.p
        p(f"v_mov_b32 v3, 0"); p(f"v_mov_b32 v23, 1"); p("s_lshl_b32 s38, s37, 2")
        self.masked(1, lambda: p(f"buffer_store_dword v23, v3, s[64:67], s38 offen offset:{ph*128} sc1"))
    def lanemax(self, regs, tmps):
        p = self.p
        for sw in ("v_permlane32_swap_b32", "v_permlane16_swap_b32"):
            for r, t in zip(regs, tmps): p(f"v_mov_b32 v{t}, v{r}")
            for r, t in zip(regs, tmps): p(f"{sw} v{r}, v{t}")
            for r, t in zip(regs, tmps): p(f"v_max_f32 v{r}, v{r}, v{t}")

    def attention(self):
        p = self.p; o = self.o
        p.wait_vm(max(self.tokK[0], self.tokK[1]))
        p.wait_all(vm=False); p("s_barrier")
        for j in range(5):
            for ds in range(4):
                p(f"ds_read_b128 {ar(QB(ds,j))}, v23 offset:{ds*5120 + j*1024}")
                if j == 0 and ds == 3: pass
        self.pre_front = [t for c in sorted(o['front']) if c <= 9 for t in o['front'][c]]
        p("L_att:")
        self.m0key = None; self.s51val = None
        self.run(self.rdK(0))
        mf = []
        for j in range(5): mf += self.qk(0, j, "0")
        dm = []
        for t in o['front'].get(10, ()): dm += self.dmaT(t)
        M = [TMP + 4 + j for j in range(5)]; M2 = [TMP + 12 + j for j in range(5)]
        mx = []
        for j in range(5):
            a, b = S(j, 0), S(j, 1)
            mx.append([f"v_max3_f32 v{M[j]}, v{a}, v{a+1}, v{a+2}", f"v_max3_f32 v{M2[j]}, v{a+3}, v{b}, v{b+1}",
                       f"v_max3_f32 v{M[j]}, v{M[j]}, v{b+2}, v{b+3}", f"v_max_f32 v{M[j]}, v{M[j]}, v{M2[j]}"])
        fs = [(self.rdK(1), 4, 20), (dm, 0, 38)]
        for j in range(3): fs.append((mx[j], 8 * j + 14, 8 * j + 22))
        self.mix(mf, *fs)
        self.run(mx[3:])
        self.lanemax(M, M2)
        p(f"s_lshl_b32 s38, s32, 11"); p(f"s_add_u32 s38, s38, {MISC}"); p(f"v_add_u32 v3, s38, v{LIN}")
        p(f"ds_write_b128 v3, {vr(M[0])}"); p(f"ds_write_b32 v3, v{M[4]} offset:1024")
        p(f"v_xor_b32 v3, 4096, v3")
        p.wait_all(vm=False); p("s_barrier")
        p(f"ds_read_b128 {vr(M2[0])}, v3"); p(f"ds_read_b32 v{M2[4]}, v3 offset:1024")
        p.wait_all(vm=False)
        p("s_cmp_lg_u32 s50, 0"); p("s_cbranch_scc1 L_havem")
        for j in range(5):
            n = NEGM + 4 * j
            p(f"v_max_f32 v{M[j]}, v{M[j]}, v{M2[j]}")
            for i in range(4): p(f"v_sub_f32 v{n+i}, 0, v{M[j]}")
        p("L_havem:")
        for j in range(5):
            for kt in range(2):
                for hh in range(2):
                    b = S(j, kt) + 2 * hh
                    p(f"v_pk_add_f32 {vr(b,2)}, {vr(b,2)}, {vr(NEGM+4*j,2)}")
            self.run(self.expo(0, j))
        self.stamp("aprol")
        for s in range(16):
            toks = [self.tokV[s]]
            if s + 2 <= 15: toks.append(self.tokK[s + 2])
            if s == 15: toks.append(self.tokU[0])
            p.wait_bar(max(toks))
            self.stamp(f"it{s}")
            dm = []
            for i in range(16):
                if i < s + o['dV'] and i not in self.tokV: dm += self.dmaV(i); self.tokV[i] = None
            for i in range(16):
                if i <= s + o['dK'] and i not in self.tokK: dm += self.dmaK(i); self.tokK[i] = None
            for i in range(16):
                if i <= s + o['dV'] and i not in self.tokV: dm += self.dmaV(i); self.tokV[i] = None
            if s == 1: dm += self.flagzero()
            if s == 5: dm += self.readyset()
            if s == o['wotouch_it'] and o['wotouch']: dm += self.wotouch()
            if s == o['u0']: dm += self.dmaU(0)
            if s == o['u1']: dm += self.dmaU(1)
            if s == 14: dm += self.readyload()
            PV = [self.pv(s, j) for j in range(5)]
            rv = self.rdV(s); rp = self.rdP(s)
            early = rv[:8] + rp[:1] + rv[8:] + rp[1:]
            if s < 15:
                Q = [self.qk(s + 1, j, vr(NEGM + 4 * j)) for j in range(5)]
                mf = Q[0] + Q[1] + Q[2] + PV[0] + Q[3] + PV[1] + Q[4] + PV[2] + PV[3] + PV[4]
                def mark(): self.tokE = p.lg_seq
                def waitE(): p.wait_lg(self.tokE); p("s_nop 0")
                fs = [(early + [typed('Z', mark)], 0, 14), ([typed('2', waitE)], 21, 22)]
                for j in range(5): fs.append((self.expo(s + 1, j), 14 + 14 * j, 28 + 14 * j))
                if s + 2 <= 15: fs.append((self.rdK(s + 2), 24, 76))
                fs.append((dm, 0, o.get('dmhi', 64)))
                self.mix(mf, *fs, tag=f"it{s}")
            else:
                self.run(early)
                p(f"s_mov_b32 s40, {f2u(o['thr'])}")
                p("s_mov_b64 s[62:63], 0")
                mf = PV[0] + PV[1] + PV[2] + PV[3] + PV[4]
                fs = [(self.rdW(0), 0, 10), (dm, 0, 40)]
                fs.append((self.ofin(0) + self.ofin(1), 12, 50))
                self.mix(mf, *fs, tag="it15")
                for j in range(2, 5): self.run(self.ofin(j, True))
        self.stamp("adone")
        p("s_cmp_lg_u64 s[62:63], 0"); p("s_cselect_b32 s38, 1, 0")
        p(f"v_mov_b32 v3, s38"); p(f"s_lshl_b32 s39, s32, 2"); p(f"s_add_u32 s39, s39, {OG + 40960}"); p(f"v_mov_b32 v23, s39")
        p(f"ds_write_b32 v23, v3")
        p.wait_vm(self.tokU[1])
        p.wait_all(vm=False); p("s_barrier")
        self.stamp("pb")
    def ofin(self, j, pk=False):
        r = TMP + 2 * (j & 1); out = []
        out.append(f"v_accvgpr_read_b32 v{r}, a{LACC+4*j}")
        out += [f"v_cmp_nle_f32 vcc, v{r}, s40", f"v_rcp_f32_e64 v{r}, v{r}"]
        out.append("s_or_b64 s[62:63], s[62:63], vcc")
        for sl in range(2):
            t = TMP + 4 + ((2 * j + sl) % 4) * 4
            for k in range(2):
                a = O(2 * sl + k, j)
                if pk:
                    out.append(f"v_pk_mul_f32 {vr(a,2)}, {vr(a,2)}, {vr(r,2)} op_sel_hi:[1,0]")
                    out.append(f"v_pk_mul_f32 {vr(a+2,2)}, {vr(a+2,2)}, {vr(r,2)} op_sel_hi:[1,0]")
                else: out += [f"v_mul_f32_e64 v{a+i}, v{a+i}, v{r}" for i in range(4)]
                out.append(f"v_cvt_pk_bf16_f32 v{t+2*k}, v{a}, v{a+1}")
                out.append(f"v_cvt_pk_bf16_f32 v{t+2*k+1}, v{a+2}, v{a+3}")
            out.append(f"ds_write_b128 v{OGW}, {vr(t)} offset:{(sl*5+j)*1024}")
        return out
    def rdW(self, u):
        buf = UBUF[u % 3]; out = []
        W = WA(u & 1)
        win = 1 if buf >= 128 * K1 else 0; off = buf - win * 128 * K1
        if u < 8:
            for sg in range(4):
                for a in range(2):
                    for hh in range(2):
                        out.append(f"ds_read_b64_tr_b16 {ar(W+(sg*2+a)*4+2*hh,2)}, v{WRD+2*win+a} offset:{off+sg*8192+hh*4096}")
        else:
            assert win == 1
            for sg in range(8):
                for hh in range(2):
                    out.append(f"ds_read_b64_tr_b16 {ar(W+sg*4+2*hh,2)}, v{W4RD} offset:{off+sg*4096+hh*2048}")
        return out
    def rdO(self, sgs):
        out = []
        for sg in sgs:
            w2 = (sg >> 2) + 2 * ((sg >> 1) & 1)
            for j in range(5):
                out.append(f"ds_read_b128 {ar(OB(sg,j))}, v{OGR} offset:{w2*10240 + ((sg&1)*5+j)*1024}")
        return out
    def oproj(self):
        p = self.p; o = self.o; stflag = o['stflag']
        p(f"v_mov_b32 v23, {OG + 40960}")
        p(f"ds_read_b128 {vr(TMP+20)}, v23")
        self.run(self.rdO(range(4)))
        p(f"v_or3_b32 v{TMP+20}, v{TMP+20}, v{TMP+21}, v{TMP+22}")
        p(f"v_or_b32 v{TMP+20}, v{TMP+20}, v{TMP+23}")
        p(f"v_readfirstlane_b32 s38, v{TMP+20}")
        p("s_andn2_b32 s38, s38, s50")
        p("s_cbranch_scc1 L_fallback")
        def ACC(g, a, j): return OREG + (g & 1) * 40 + (a * 5 + j) * 4
        self.tokS = {}
        def stores(g):
            out = []
            for j in range(5):
                t = 28 + (j % 5) * 4
                if g < 4:
                    a, b = ACC(g, 0, j), ACC(g, 1, j)
                    out.append([f"v_cvt_pk_bf16_f32 v{t}, v{a}, v{a+1}", f"v_cvt_pk_bf16_f32 v{t+1}, v{a+2}, v{a+3}"])
                    out.append([f"v_cvt_pk_bf16_f32 v{t+2}, v{b}, v{b+1}", f"v_cvt_pk_bf16_f32 v{t+3}, v{b+2}, v{b+3}"])
                    def f(t=t, j=j):
                        self.tokS[g] = p(f"buffer_store_dwordx4 {vr(t)}, v{STA}, s[24:27], s3 offen{stflag}")
                    out += [f"s_mov_b32 s3, {g*20480+j*1024}", typed('W', f)]
                else:
                    a = ACC(g, 0, j); t = 48 + j * 2
                    out.append([f"v_cvt_pk_bf16_f32 v{t}, v{a}, v{a+1}", f"v_cvt_pk_bf16_f32 v{t+1}, v{a+2}, v{a+3}"])
                    def f(t=t, j=j):
                        self.tokS[g] = p(f"buffer_store_dwordx2 {vr(t,2)}, v{STB}, s[24:27], s3 offen{stflag}")
                    out += [f"s_mov_b32 s3, {81920+j*512}", typed('w', f)]
            return out
        for u in range(9):
            if u > 0:
                if u == 8: self.readycheck()
                p.wait_bar(self.tokU[u + 1] if u + 1 <= 8 else self.tokS[2])
            self.stamp(f"u{u}")
            if u == 8: self.flagset(0)
            dm = []
            if u == 0: dm += self.dmaU(2)
            if u + 3 <= 8: dm += self.dmaU(u + 3)
            W = WA(u & 1); g = u >> 1
            mf = []
            if u < 8:
                k = u & 1
                for sg in range(4):
                    for a in range(2):
                        for j in range(5):
                            c = "0" if (k == 0 and sg == 0) else vr(ACC(g, a, j))
                            mf.append(f"{MF} {vr(ACC(g,a,j))}, {ar(W+(sg*2+a)*4)}, {ar(OB(4*k+sg,j))}, {c}")
            else:
                for sg in range(8):
                    for j in range(5):
                        c = "0" if sg == 0 else vr(ACC(g, 0, j))
                        mf.append(f"{MF} {vr(ACC(g,0,j))}, {ar(W+sg*4)}, {ar(OB(sg,j))}, {c}")
            fs = []
            if u == 0: fs.append((self.rdO(range(4, 8)) + self.rdW(1), 2, 36))
            elif u + 1 <= 8: fs.append((self.rdW(u + 1), 0, 32))
            st = u >= 2 and u % 2 == 0
            if dm: fs.append((dm, 0, 22 if st else 38))
            if st: fs.append((stores(g - 1), 22 if dm else 2, 38 if dm else 24))
            if u == 7: fs.append((self.red_setup(), 0, 38))
            self.mix(mf, *fs, tag=f"u{u}")
        self.run(stores(4))
        self.stamp("odone")
    def red_setup(self):
        L = f"""s_lshl_b32 s38, s32, 4
        s_add_u32 s48, s38, s37
        v_and_b32 v1, 15, v0
        v_lshlrev_b32 v4, 2, v1
        v_bfe_u32 v5, v0, 4, 1
        v_lshl_add_u32 v4, v5, 7, v4
        v_lshrrev_b32 v2, 4, v0
        v_mul_u32_u24 v1, 2304, v1
        v_lshl_add_u32 v1, v2, 3, v1
        v_lshlrev_b32 v2, 3, v0
        s_mul_i32 s49, s36, {80*2304}
        s_mul_i32 s38, s35, 1152
        s_add_u32 s49, s49, s38
        s_mov_b32 s42, 0xffff0000
        s_lshl_b32 s54, s48, 10
        s_mul_hi_u32 s38, s48, 858993460
        s_mul_i32 s39, s38, 5
        s_sub_u32 s39, s48, s39
        s_mul_i32 s39, s39, {16*2304}
        s_lshl_b32 s60, s38, 6
        s_add_u32 s55, s49, s39
        s_add_u32 s61, s55, s60
        s_lshl_b32 s60, s38, 5
        s_add_u32 s60, s55, s60
        s_lshl_b32 s62, 0x10001, s37
        s_not_b32 s62, s62""".split("\n")
        return [x.strip() for x in L]
    def reduce(self):
        p = self.p; o = self.o; ld = o['ldflag']
        p(f"buffer_load_dword v5, v4, s[64:67], 0 offen sc1")
        p.wait_all(vm=True, lg=True, force=True)
        p("s_barrier")
        self.flagset(1)
        self.stamp("stack")
        def poll(lab, mask):
            p(f"{lab}:")
            p(f"v_cmp_ne_u32 vcc, 1, v5")
            p(f"s_and_b32 s38, vcc_lo, s62")
            p(f"s_and_b32 s38, s38, {mask}")
            p(f"s_cbranch_scc0 {lab}_ok")
            p("s_sleep 1")
            p(f"buffer_load_dword v5, v4, s[64:67], 0 offen sc1")
            p.wait_all(vm=True, lg=False, force=True)
            p(f"s_branch {lab}")
            p(f"{lab}_ok:")
        def loads(nreg, unit_s, add, lanev, base):
            lds = "buffer_load_dwordx4" if nreg == 4 else "buffer_load_dwordx2"
            for k in range(16):
                p(f"s_add_u32 s3, {unit_s}, {k*PART_BYTES + add}")
                p(f"{lds} {vr(base+k*nreg, nreg)}, v{lanev}, s[28:31], s3 offen{ld}")
        def summ(nreg, base, outs, off):
            for k in range(16):
                for r in range(nreg):
                    src = base + k * nreg + r
                    if k == 0:
                        p(f"v_lshlrev_b32 v{28+2*r}, 16, v{src}"); p(f"v_and_b32 v{29+2*r}, s42, v{src}")
                    else:
                        t = 36 + 2 * (r & 1)
                        p(f"v_lshlrev_b32 v{t}, 16, v{src}"); p(f"v_and_b32 v{t+1}, s42, v{src}")
                        p(f"v_pk_add_f32 {vr(28+2*r,2)}, {vr(28+2*r,2)}, {vr(t,2)}")
            for r in range(nreg):
                p(f"v_cvt_pk_bf16_f32 v{40+r}, v{28+2*r}, v{29+2*r}")
            p(f"buffer_store_dwordx2 v[40:41], v1, s[44:47], {outs} offen offset:{off}")
            if nreg == 4: p(f"buffer_store_dwordx2 v[42:43], v1, s[44:47], {outs} offen offset:{off+32}")
        p("s_cmp_ge_u32 s48, 60"); p("s_cbranch_scc1 L_fin")
        poll("L_pa", "0xffff")
        p.forget()
        loads(4, "s54", 0, LIN, 64)
        p("s_cmp_ge_u32 s48, 40"); p("s_cbranch_scc1 L_only1")
        p(f"v_cmp_ne_u32 vcc, 1, v5")
        p(f"s_and_b32 s38, vcc_lo, s62")
        p(f"s_and_b32 s38, s38, 0xffff0000")
        p("s_mov_b32 s63, 0")
        p(f"s_cbranch_scc0 L_go2")
        st = (p.vm_seq, p.vm_done, dict(p.vm_pend))
        summ(4, 64, "s61", 0)
        p("s_mov_b32 s63, 1")
        poll("L_pc", "0xffff0000")
        p("L_go2:")
        self.stamp("pollc")
        p("s_cmp_ge_u32 s48, 20"); p("s_cbranch_scc1 L_j3")
        loads(4, "s54", 61440, LIN, 128)
        p("s_cmp_lg_u32 s63, 0"); p("s_cbranch_scc1 L_j2b")
        p.ins.append(Ins("  s_waitcnt vmcnt(16)"))
        summ(4, 64, "s61", 0)
        p("L_j2b:")
        p.wait_all(vm=True, lg=False, force=True)
        summ(4, 128, "s61", 768)
        p("s_branch L_fin")
        p("L_j3:")
        p("s_lshr_b32 s54, s54, 1")
        loads(2, "s54", 81920 - 10240, 2, 128)
        p("s_cmp_lg_u32 s63, 0"); p("s_cbranch_scc1 L_j3b")
        p.ins.append(Ins("  s_waitcnt vmcnt(16)"))
        summ(4, 64, "s61", 0)
        p("L_j3b:")
        p.wait_all(vm=True, lg=False, force=True)
        summ(2, 128, "s60", 1024 - 128)
        p("s_branch L_fin")
        p("L_only1:")
        p.wait_all(vm=True, lg=False, force=True)
        summ(4, 64, "s61", 0)
        p("L_fin:")
        if o['stamps']:
            p.wait_all(force=True)
            self.stamp("end")
    def fallback(self):
        p = self.p; o = self.o
        p("L_fallback:")
        p.wait_all(force=True)
        p("s_barrier")
        p(f"""v_and_b32 v1, 15, v0
        v_lshrrev_b32 v2, 4, v0
        v_lshlrev_b32 v3, 8, v1
        v_lshl_add_u32 v3, v2, 5, v3
        s_mov_b32 s38, 0
        s_mov_b32 s39, 0xff800000""")
        M = [TMP + 4 + j for j in range(5)]; M2 = [TMP + 12 + j for j in range(5)]
        for j in range(5): p(f"v_mov_b32 v{M[j]}, s39")
        p("L_fb_loop:")
        for ds in range(4):
            p(f"buffer_load_dwordx4 {vr(PREG+4*ds)}, v3, s[8:11], s38 offen offset:{(ds>>1)*128+(ds&1)*16}")
        p.wait_all(force=True)
        for ds in range(4):
            for j in range(5):
                p(f"{MF} {vr(S(j,0))}, {vr(PREG+4*ds)}, {ar(QB(ds,j))}, {'0' if ds == 0 else vr(S(j,0))}")
        p("s_nop 7")
        for j in range(5):
            a = S(j, 0)
            p(f"v_max3_f32 v{M[j]}, v{M[j]}, v{a}, v{a+1}")
            p(f"v_max3_f32 v{M[j]}, v{M[j]}, v{a+2}, v{a+3}")
        p("s_add_u32 s38, s38, 4096")
        p("s_cmp_lt_u32 s38, 262144")
        p("s_cbranch_scc1 L_fb_loop")
        self.lanemax(M, M2)
        for j in range(5):
            for i in range(4): p(f"v_sub_f32 v{NEGM+4*j+i}, 0, v{M[j]}")
        p(f"v_mov_b32 v3, 0x3f803f80")
        for i in range(4): p(f"v_accvgpr_write_b32 a{ONES+i}, v3")
        p("s_mov_b32 s50, 1")
        self.m0key = None; self.s51val = None
        for t in self.pre_front: self.run(self.dmaT(t))
        p.wait_all(force=True)
        p("s_barrier")
        p("s_branch L_att")
    def dump_stamps(self):
        if not self.o['stamps']: return
        p = self.p
        p("s_cmp_lg_u32 s32, 0"); p("s_cbranch_scc1 L_end")
        if self.o.get('dbgstamps'):
            p("v_mov_b32 v1, 0")
            p("v_cmp_eq_u32 vcc, 0, v0"); p("s_and_saveexec_b64 s[38:39], vcc")
            p(f"s_not_b32 s38, s{ST0}"); p("v_mov_b32 v2, s38")
            p(f"buffer_atomic_umax v2, v1, s[56:59], 0 offen")
            for i in range(self.nst):
                p(f"v_mov_b32 v{3+i}, s{ST0+2*i}")
                p(f"buffer_atomic_umax v{3+i}, v1, s[56:59], 0 offen offset:{4+4*i}")
            p.wait_all(force=True)
            return
        p("s_load_dwordx2 s[28:29], s[0:1], 96"); p("s_waitcnt lgkmcnt(0)")
        p(f"s_add_u32 s28, s28, {STAMP_OFF}"); p("s_addc_u32 s29, s29, 0"); p(f"s_mov_b32 s30, {1<<20}"); p("s_mov_b32 s31, 0x20000")
        p("s_mul_i32 s38, s2, 160"); p("v_mov_b32 v1, s38")
        p("v_cmp_eq_u32 vcc, 0, v0"); p("s_and_saveexec_b64 s[38:39], vcc")
        for i in range(self.nst):
            p(f"v_mov_b32 v2, s{ST0+2*i}"); p(f"v_mov_b32 v3, s{ST0+1+2*i}")
            p(f"buffer_store_dwordx2 v[2:3], v1, s[28:31], 0 offen offset:{8*i}")
        p.wait_all(force=True)

def kd(name, vgpr, accum, sgpr=102):
    return f""".amdhsa_kernel {name}
  .amdhsa_next_free_vgpr {vgpr}
  .amdhsa_next_free_sgpr {sgpr}
  .amdhsa_accum_offset {accum}
  .amdhsa_group_segment_fixed_size 0
  .amdhsa_kernarg_size 104
  .amdhsa_user_sgpr_count 2
  .amdhsa_user_sgpr_kernarg_segment_ptr 1
  .amdhsa_system_sgpr_workgroup_id_x 1
  .amdhsa_float_denorm_mode_32 3
.end_amdhsa_kernel
"""

def build(**o):
    g = Gen(**o)
    g.prologue(); g.qproj(); g.attention(); g.oproj(); g.reduce(); g.dump_stamps()
    g.p("L_end:"); g.p("s_endpgm")
    g.fallback()
    g.p.finalize()
    if o.get('align', True):
        r = align(g.p)
        if o.get('verbose'): print("align: bytes, widened, nops", r)
    hdr = open("cdna_kernels/" + NAME + ".s.ref").read().split("; Override launch")[0]
    out = hdr
    out += f"; @launch grid=(256,1,1) block=(256,1,1) lds=163840\n"
    if g.stn: out += "; stamps: " + " ".join(g.stn) + "\n"
    out += '.amdgcn_target "amdgcn-amd-amdhsa--gfx950"\n.text\n'
    out += f".globl {NAME}_kernel\n.p2align 8\n.type {NAME}_kernel,@function\n{NAME}_kernel:\n" + g.p.text()
    out += '.section .rodata,"a"\n.p2align 6\n' + kd(NAME + "_kernel", 512, 256)
    return out

if __name__ == "__main__":
    C = "karg c0 c6 aprol it4 it8 it12 it15 adone u4 odone stack pollc end".split()
    open("../cdna_kernels/k4_dbg.s", "w").write(build(stamps=True, stampset=C, dbgstamps=True))
```
